```python
import torch

def _softmax(x, axis=-1):
    return torch.softmax(x, dim=axis)
def _gelu(x):
    return torch.nn.functional.gelu(x, approximate="tanh")
def _silu(x):
    return torch.nn.functional.silu(x)
def _sigmoid(x):
    return torch.sigmoid(x)
def _layernorm(x, axis=-1, eps=1e-5):
    m = x.mean(dim=axis, keepdim=True)
    v = x.var(dim=axis, keepdim=True, unbiased=False)
    return (x - m) / torch.sqrt(v + eps)
def _scatter_add(tgt, idx, src, axis=0):
    return tgt.clone().index_add_(axis, idx, src)
def _segment_sum(src, seg, n):
    out = torch.zeros((n,) + src.shape[1:], dtype=src.dtype)
    return out.index_add_(0, seg, src)
def _pad(x, pw):
    flat = tuple(v for pair in reversed(pw) for v in pair)
    return torch.nn.functional.pad(x, flat)

kernel_name = 'parallel_sum__softmax_full_mha__dense_activation_relu__prompt'

def setup_inputs():

    _w = (lambda a: (lambda t: t.to(torch.bfloat16) if t.is_floating_point() else t)(torch.as_tensor(a)))
    def _A_setup():
        B, S, D = 1, 2048, 1024
        return {
            "x": _w((lambda *s: torch.randn(*s, dtype=torch.bfloat16) * 0.05)(B, S, D)),
            "wqkv": _w((lambda *s: torch.randn(*s, dtype=torch.bfloat16) * 0.05)(D, 3 * D)),
            "wo": _w((lambda *s: torch.randn(*s, dtype=torch.bfloat16) * 0.05)(D, D)),
        }
    _A_in = _A_setup()

    def _B_setup():
        B, S, D, Dff = 1, 2048, 1024, 3584
        return {
            "x": _w((lambda *s: torch.randn(*s, dtype=torch.bfloat16) * 0.05)(B, S, D)),
            "w1": _w((lambda *s: torch.randn(*s, dtype=torch.bfloat16) * 0.05)(D, Dff)),
            "w2": _w((lambda *s: torch.randn(*s, dtype=torch.bfloat16) * 0.05)(Dff, D)),
        }
    _B_in = _B_setup()

    return {
        "A_x": _A_in["x"],
        "A_wqkv": _A_in["wqkv"],
        "A_wo": _A_in["wo"],
        "B_x": _B_in["x"],
        "B_w1": _B_in["w1"],
        "B_w2": _B_in["w2"],
    }

def reference(A_x, A_wqkv, A_wo, B_x, B_w1, B_w2):
    def _A_ref(x, wqkv, wo):
        B, S, D = x.shape
        H = 32; Dh = D // H
        qkv = (lambda x, *d: x.permute(*d))((x @ wqkv).reshape(B, S, 3, H, Dh), 2, 0, 3, 1, 4)
        q, k, v = qkv[0], qkv[1], qkv[2]
        scale = Dh ** -0.5
        scores = torch.einsum("bhqd,bhkd->bhqk", q, k) * scale
        p = _softmax(scores, axis=-1)
        o = torch.einsum("bhqk,bhkd->bhqd", p, v)
        return (lambda x, *d: x.permute(*d))(o, 0, 2, 1, 3).reshape(B, S, D) @ wo

    def _B_ref(x, w1, w2):
        h = torch.einsum("bsd,df->bsf", x, w1)
        zero = torch.zeros_like(h)
        h = torch.maximum(h, zero)
        return torch.einsum("bsf,fd->bsd", h, w2)

    x = A_x
    xn = _layernorm(x, axis=-1)
    return x + _A_ref(xn, A_wqkv, A_wo) + _B_ref(xn, B_w1, B_w2)
```

```python
class Asm:
    def __init__(self):
        self.lines = []
        self.uid = 0
    def __call__(self, s):
        for l in s.split("\n"):
            l = l.strip()
            if l:
                self.lines.append(("" if l.endswith(":") or l.startswith(".") else "    ") + l)
    def c(self, s):
        self.lines.append("    ; " + s)
    def label(self, p="L"):
        self.uid += 1
        return f"{p}_{self.uid}"
    def text(self):
        return "\n".join(self.lines) + "\n"

def vr(b, n=1, p="v"):
    return f"{p}{b}" if n == 1 else f"{p}[{b}:{b+n-1}]"
def ar(b, n=1): return vr(b, n, "a")
def sr(b, n=1): return vr(b, n, "s")

def srd(a, d, ptr, off, size):
    if off:
        a(f"s_add_u32 s{d}, s{ptr}, {hex(off)}")
        a(f"s_addc_u32 s{d+1}, s{ptr+1}, 0")
    else:
        a(f"s_mov_b32 s{d}, s{ptr}")
        a(f"s_mov_b32 s{d+1}, s{ptr+1}")
    a(f"s_mov_b32 s{d+2}, {hex(size)}")
    a(f"s_mov_b32 s{d+3}, 0x00020000")

def interleave(main, fill, start=0, end=None):
    n = len(main)
    if end is None: end = n
    out = []
    span = end - start
    pos = {}
    for i, f in enumerate(fill):
        p = start + (i * span) // max(len(fill), 1)
        pos.setdefault(p, []).append(f)
    for i, m in enumerate(main):
        out.append(m)
        for f in pos.get(i, []):
            out.extend(f if isinstance(f, list) else [f])
    return out

def kernel_begin(a, name):
    a(f".globl {name}")
    a(".p2align 8")
    a(f".type {name},@function")
    a(f"{name}:")

def kernel_desc(name, vgpr, accum, sgpr=102):
    return f""".p2align 6
.amdhsa_kernel {name}
  .amdhsa_next_free_vgpr {vgpr}
  .amdhsa_next_free_sgpr {sgpr}
  .amdhsa_accum_offset {accum}
  .amdhsa_group_segment_fixed_size 0
  .amdhsa_kernarg_size 72
  .amdhsa_user_sgpr_count 2
  .amdhsa_user_sgpr_kernarg_segment_ptr 1
  .amdhsa_system_sgpr_workgroup_id_x 1
.end_amdhsa_kernel
"""
```

```python
import sys, math
from asmlib import *

NAME = "parallel_sum__softmax_full_mha__dense_activation_relu__prompt"
KA_X, KA_WQKV, KA_WO, KA_BX, KA_W1, KA_W2, KA_OUT, KA_DBG, KA_WS = 0, 8, 16, 24, 32, 40, 48, 56, 64
MB = 1 << 20
XN_OFF, XN_SZ = 0, 4 * MB
QF_OFF, QF_SZ = 4 * MB, 4 * MB
KV_OFF, KV_SZ = 8 * MB, 8 * MB
A2_OFF, A2_SZ = 16 * MB, 144 * 131072
QSCALE = (32 ** -0.5) * math.log2(math.e)
import struct
def f32(x): return hex(struct.unpack("<I", struct.pack("<f", x))[0])

def gen_ln(a):
    kernel_begin(a, "ln_kernel")
    a("s_cmp_ge_u32 s2, 256")
    a("s_cbranch_scc1 LN_end")
    a(f"s_load_dwordx2 s[4:5], s[0:1], {KA_X}")
    a(f"s_load_dwordx2 s[6:7], s[0:1], {KA_WS}")
    a("""v_and_b32 v1, 63, v0
    v_lshrrev_b32 v2, 6, v0
    v_lshrrev_b32 v3, 3, v1
    v_and_b32 v4, 7, v1
    s_lshl_b32 s3, s2, 14
    v_lshlrev_b32 v5, 11, v3
    v_lshl_add_u32 v5, v2, 9, v5
    v_lshl_add_u32 v5, v4, 4, v5
    s_waitcnt lgkmcnt(0)""")
    srd(a, 8, 4, 0, 4 * MB)
    srd(a, 12, 6, XN_OFF, XN_SZ)
    for i in range(4):
        a(f"buffer_load_dwordx4 v[{8+4*i}:{11+4*i}], v5, s[8:11], s3 offen offset:{128*i}")
    a("""v_lshrrev_b32 v6, 2, v4
    v_lshl_add_u32 v6, v2, 3, v6
    v_lshlrev_b32 v6, 17, v6
    v_and_b32 v7, 3, v4
    v_lshl_add_u32 v6, v7, 8, v6
    v_lshl_add_u32 v6, v3, 4, v6
    s_lshr_b32 s16, s2, 1
    s_lshl_b32 s16, s16, 10
    s_and_b32 s17, s2, 1
    s_lshl_b32 s17, s17, 7
    s_add_u32 s16, s16, s17
    s_add_u32 s17, s16, 0x40000
    s_add_u32 s18, s16, 0x80000
    s_add_u32 s19, s16, 0xc0000
    v_lshlrev_b32 v60, 3, v3
    v_lshl_add_u32 v61, v2, 6, v60
    s_mov_b32 s20, 0xffff0000""")
    for i in range(4):
        a(f"s_waitcnt vmcnt({3-i})")
        for j in range(4 * i, 4 * i + 4):
            a(f"v_lshlrev_b32 v{24+2*j}, 16, v{8+j}")
            a(f"v_and_b32 v{25+2*j}, s20, v{8+j}")
    for p in range(4):
        a(f"v_add_f32 v{56+p}, v{24+8*p}, v{25+8*p}")
    for k in range(2, 8):
        for p in range(4):
            a(f"v_add_f32 v{56+p}, v{56+p}, v{24+8*p+k}")
    def red(reg):
        a(f"v_add_f32 v56, v56, v57\nv_add_f32 v58, v58, v59\nv_add_f32 v{reg}, v56, v58")
        for d in ("quad_perm:[1,0,3,2]", "quad_perm:[2,3,0,1]", "row_half_mirror"):
            a("s_nop 1")
            a(f"v_add_f32_dpp v{reg}, v{reg}, v{reg} {d} row_mask:0xf bank_mask:0xf")
    red(62)
    a(f"v_mul_f32 v62, {f32(1/256)}, v62")
    for p in range(4):
        a(f"v_mov_b32 v{56+p}, 0")
    for k in range(8):
        for p in range(4):
            a(f"v_sub_f32 v{8+p}, v{24+8*p+k}, v62")
        for p in range(4):
            a(f"v_fmac_f32 v{56+p}, v{8+p}, v{8+p}")
    red(63)
    a("ds_write_b64 v61, v[62:63]")
    a("s_waitcnt lgkmcnt(0)")
    a("s_barrier")
    for w in range(4):
        a(f"ds_read_b64 v[{8+2*w}:{9+2*w}], v60 offset:{64*w}")
    a("s_waitcnt lgkmcnt(0)")
    a("""v_add_f32 v16, v8, v10
    v_add_f32 v17, v12, v14
    v_add_f32 v16, v16, v17
    v_mul_f32 v16, 0.25, v16
    v_add_f32 v17, v9, v11
    v_add_f32 v18, v13, v15
    v_add_f32 v17, v17, v18
    v_sub_f32 v8, v8, v16
    v_sub_f32 v10, v10, v16
    v_sub_f32 v12, v12, v16
    v_sub_f32 v14, v14, v16
    v_mul_f32 v18, v8, v8
    v_fmac_f32 v18, v10, v10
    v_fmac_f32 v18, v12, v12
    v_fmac_f32 v18, v14, v14
    v_mul_f32 v18, 0.25, v18""")
    a(f"v_fmac_f32 v18, {f32(1/1024)}, v17")
    a("""v_cvt_pk_bf16_f32 v16, v16, v16
    v_cvt_pk_bf16_f32 v18, v18, v18
    v_lshlrev_b32 v16, 16, v16
    v_lshlrev_b32 v18, 16, v18""")
    a(f"v_add_f32 v18, {f32(1e-5)}, v18")
    a("""v_cvt_pk_bf16_f32 v18, v18, v18
    v_lshlrev_b32 v18, 16, v18
    v_sqrt_f32 v18, v18
    s_nop 0
    v_cvt_pk_bf16_f32 v18, v18, v18
    v_lshlrev_b32 v18, 16, v18
    v_rcp_f32 v18, v18""")
    for i in range(4):
        for j in range(4 * i, 4 * i + 4):
            x0, x1 = 24 + 2 * j, 25 + 2 * j
            a(f"v_sub_f32 v{x0}, v{x0}, v16\nv_sub_f32 v{x1}, v{x1}, v16")
        for j in range(4 * i, 4 * i + 4):
            x0, x1 = 24 + 2 * j, 25 + 2 * j
            a(f"v_cvt_pk_bf16_f32 v{x1}, v{x0}, v{x1}")
        for j in range(4 * i, 4 * i + 4):
            x0, x1 = 24 + 2 * j, 25 + 2 * j
            a(f"v_lshlrev_b32 v{x0}, 16, v{x1}\nv_and_b32 v{x1}, s20, v{x1}")
        for j in range(4 * i, 4 * i + 4):
            x0, x1 = 24 + 2 * j, 25 + 2 * j
            a(f"v_mul_f32 v{x0}, v{x0}, v18\nv_mul_f32 v{x1}, v{x1}, v18")
        for j in range(4 * i, 4 * i + 4):
            x0, x1 = 24 + 2 * j, 25 + 2 * j
            a(f"v_cvt_pk_bf16_f32 v{64+j}, v{x0}, v{x1}")
        a(f"buffer_store_dwordx4 v[{64+4*i}:{67+4*i}], v6, s[12:15], s{16+i} offen")
    a("LN_end:")
    a("s_endpgm")
    return kernel_desc("ln_kernel", 80, 80, 32)

def gen_gemm1(a, opt):
    kernel_begin(a, "gemm1_kernel")
    a("s_cmp_ge_u32 s2, 256")
    a("s_cbranch_scc1 G1_end")
    a(f"s_load_dwordx2 s[4:5], s[0:1], {KA_WQKV}")
    a(f"s_load_dwordx2 s[6:7], s[0:1], {KA_W1}")
    a(f"s_load_dwordx2 s[24:25], s[0:1], {KA_WS}")
    T = 224
    vLane, vG, vT = T, T + 1, T + 2
    vArd = T + 3
    vBrd = T + 5
    vAdma = T + 11
    vBdma = T + 12
    vt0, vt1, vt2, vt3 = T + 16, T + 17, T + 18, T + 19
    vE0, vE1, vE2 = T + 20, T + 21, T + 22
    sW, sWR, sWC, sMT, sCT = 26, 27, 28, 29, 30
    sOffA, sOffB, sM0A, sM0B, sIt = 31, 32, 33, 34, 35
    sTmp = 36
    a(f"""v_and_b32 v{vLane}, 63, v0
    v_lshrrev_b32 v{vt0}, 6, v0
    v_lshrrev_b32 v{vG}, 4, v{vLane}
    v_readfirstlane_b32 s{sW}, v{vt0}
    v_and_b32 v{vT}, 15, v{vLane}
    s_and_b32 s3, s2, 7
    s_lshr_b32 s{sTmp}, s2, 3
    s_and_b32 s{sMT}, s{sTmp}, 7
    s_lshr_b32 s{sTmp}, s{sTmp}, 3
    s_and_b32 s{sCT}, s{sTmp}, 1
    s_lshl_b32 s3, s3, 1
    s_add_u32 s{sCT}, s{sCT}, s3
    s_lshr_b32 s{sWR}, s{sW}, 1
    s_and_b32 s{sWC}, s{sW}, 1
    v_lshlrev_b32 v{vAdma}, 4, v{vLane}
    s_lshl_b32 s{sOffA}, s{sMT}, 14
    s_lshl_b32 s{sM0A}, s{sW}, 12
    s_add_u32 s{sOffA}, s{sOffA}, s{sM0A}
    s_mov_b32 s{sOffB}, 0
    s_lshl_b32 s3, s{sWR}, 13
    v_add_u32 v{vArd}, s3, v{vAdma}
    v_add_u32 v{vArd+1}, 0x10000, v{vArd}
    s_waitcnt lgkmcnt(0)""")
    srd(a, 8, 24, XN_OFF, XN_SZ)
    a(f"s_cmp_ge_u32 s{sTmp}, 2")
    a("s_cbranch_scc1 G1_ffn")

    for path in ("qkv", "ffn"):
        ffn = path == "ffn"
        NB = 7 if ffn else 6
        CPR = 28 if ffn else 24
        PITCH = CPR * 16
        PPW = 4 if ffn else 3
        WP = 7168 if ffn else 6144
        LPS = 4 + PPW
        MAGIC = -(-65536 // CPR)
        assert all((p * MAGIC) >> 16 == p // CPR for p in range(1024))
        if ffn:
            a("G1_ffn:")
            srd(a, 12, 6, 0, 1024 * WP)
            srd(a, 16, 24, A2_OFF, A2_SZ)
        else:
            srd(a, 12, 4, 0, 1024 * WP)
            srd(a, 16, 24, QF_OFF, QF_SZ)
            srd(a, 20, 24, KV_OFF, KV_SZ)
        a(f"s_mul_i32 s{sM0B}, s{sW}, {PPW*1024}")
        a(f"s_add_u32 s{sM0B}, s{sM0B}, 0x4000")
        a(f"s_mul_i32 s{sTmp}, s{sCT}, {448 if ffn else 128}")
        a(f"s_mul_i32 s3, s{sW}, {PPW*64}")
        a(f"s_mov_b32 s{sTmp+1}, {MAGIC}")
        a(f"s_mov_b32 s{sTmp+2}, {WP}")
        for q in range(PPW):
            d = vBdma + q
            a(f"v_add_u32 v{vt0}, s3, v{vLane}")
            if q: a(f"v_add_u32 v{vt0}, {64*q}, v{vt0}")
            a(f"v_mul_lo_u32 v{vt1}, v{vt0}, s{sTmp+1}")
            a(f"v_lshrrev_b32 v{vt1}, 16, v{vt1}")
            a(f"v_mul_u32_u24 v{vt2}, {CPR}, v{vt1}")
            a(f"v_sub_u32 v{vt0}, v{vt0}, v{vt2}")
            if ffn:
                a(f"v_bfe_u32 v{vt2}, v{vt1}, 3, 1")
                a(f"v_lshlrev_b32 v{vt2}, 1, v{vt2}")
                a(f"v_xor_b32 v{vt0}, v{vt0}, v{vt2}")
                a(f"v_lshlrev_b32 v{vt0}, 4, v{vt0}")
            else:
                a(f"v_and_b32 v{vt2}, 2, v{vt1}")
                a(f"v_bfe_u32 v{vt3}, v{vt1}, 3, 1")
                a(f"v_lshl_or_b32 v{vt2}, v{vt3}, 2, v{vt2}")
                a(f"v_xor_b32 v{vt0}, v{vt0}, v{vt2}")
                a(f"v_lshrrev_b32 v{vt2}, 3, v{vt0}")
                a(f"v_and_b32 v{vt0}, 7, v{vt0}")
                a(f"v_lshlrev_b32 v{vt0}, 4, v{vt0}")
                a(f"v_lshl_add_u32 v{vt0}, v{vt2}, 11, v{vt0}")
            a(f"v_mul_lo_u32 v{vt2}, v{vt1}, s{sTmp+2}")
            a(f"v_add3_u32 v{d}, v{vt2}, v{vt0}, s{sTmp}")
            if q: a(f"v_subrev_u32 v{d}, {1024*q}, v{d}")
            if ffn:
                a(f"v_cmp_lt_u32 vcc, 31, v{vt1}")
                a(f"v_mov_b32 v{vt2}, 0x80000000")
                a("s_nop 0")
                a(f"v_cndmask_b32 v{d}, v{d}, v{vt2}, vcc")
        def dma(slot):
            L = [[f"s_add_u32 m0, s{sM0A}, {slot*32768}",
                  f"s_nop 0",
                  f"buffer_load_dwordx4 v{vAdma}, s[8:11], s{sOffA} offen lds"]]
            for q in range(1, 4):
                L.append([f"buffer_load_dwordx4 v{vAdma}, s[8:11], s{sOffA} offen offset:{1024*q} lds"])
            L[-1].append(f"s_add_u32 s{sOffA}, s{sOffA}, 0x20000")
            L.append([f"s_add_u32 m0, s{sM0B}, {slot*32768}", "s_nop 0",
                      f"buffer_load_dwordx4 v{vBdma}, s[12:15], s{sOffB} offen lds"])
            for q in range(1, PPW):
                L.append([f"buffer_load_dwordx4 v{vBdma+q}, s[12:15], s{sOffB} offen offset:{1024*q} lds"])
            L[-1].append(f"s_add_u32 s{sOffB}, s{sOffB}, {32*WP}")
            return L
        for s in range(4):
            for g in dma(s):
                for l in g: a(l)
        a(f"v_lshrrev_b32 v{vt0}, 2, v{vT}")
        a(f"v_lshl_add_u32 v{vt1}, v{vG}, 3, v{vt0}")
        a(f"v_mul_u32_u24 v{vt1}, {PITCH}, v{vt1}")
        a(f"v_and_b32 v{vt2}, 3, v{vLane}")
        a(f"v_lshl_add_u32 v{vt1}, v{vt2}, 3, v{vt1}")
        a(f"v_and_b32 v{vt2}, 1, v{vG}")
        if ffn:
            a(f"v_lshlrev_b32 v{vt3}, 5, v{vt2}")
            a(f"s_lshl_b32 s3, s{sWC}, 8")
            a(f"v_add3_u32 v{vBrd}, v{vt1}, v{vt3}, s3")
            a(f"v_sub_u32 v{vBrd+1}, v{vt1}, v{vt3}")
            a(f"v_add_u32 v{vBrd+1}, s3, v{vBrd+1}")
            a(f"s_add_u32 s3, s{sWC}, 6")
            a(f"v_xor_b32 v{vt3}, s3, v{vt2}")
            a(f"v_lshl_add_u32 v{vBrd+2}, v{vt3}, 5, v{vt1}")
            nb_ = 3
        else:
            a(f"v_lshrrev_b32 v{vt0}, 1, v{vt0}")
            a(f"v_lshl_or_b32 v{vt0}, v{vt2}, 1, v{vt0}")
            a(f"s_lshl_b32 s3, s{sWC}, 1")
            a(f"v_xor_b32 v{vt3}, s3, v{vt0}")
            a(f"v_lshl_add_u32 v{vBrd}, v{vt3}, 5, v{vt1}")
            a(f"v_xor_b32 v{vt3}, 1, v{vt3}")
            a(f"v_lshl_add_u32 v{vBrd+1}, v{vt3}, 5, v{vt1}")
            nb_ = 2
        for i in range(nb_):
            a(f"v_add_u32 v{vBrd+3+i}, 0x10000, v{vBrd+i}")
        def fA(st, mi): return 64 * st + 4 * mi
        def fB(st, ni): return 64 * st + 32 + 4 * ni
        def reads(slot, st):
            hi = slot >> 1
            so = (slot & 1) * 32768
            LA = [f"ds_read_b128 {ar(fA(st,mi),4)}, v{vArd+hi} offset:{so+1024*mi}" for mi in range(8)]
            LB = []
            for ni in range(NB):
                for i in range(2):
                    if ffn:
                        if ni < 6: base, off = vBrd + (ni & 1), 32 * ni
                        else: base, off = vBrd + 2, 0
                    else:
                        base, off = vBrd + (ni & 1), 128 * (ni >> 1)
                    LB.append(f"ds_read_b64_tr_b16 {ar(fB(st,ni)+2*i,2)}, v{base+3*hi} offset:{so+16384+i*4*PITCH+off}")
            out = []
            while LA or LB:
                if LB: out.append(LB.pop(0))
                if LB: out.append(LB.pop(0))
                if LA: out.append(LA.pop(0))
            return out
        def acc(mi, ni):
            if ffn:
                return (mi * 7 + ni) * 4
            if ni < 4: return (mi * 4 + ni) * 4
            return 128 + (((mi >> 1) * 2 + (ni - 4)) * 2 + (mi & 1)) * 4
        def mfmas(st):
            L = []
            for ni in range(NB):
                for mi in range(8):
                    d = vr(acc(mi, ni), 4)
                    if (not ffn) and ni >= 4:
                        L.append(f"v_mfma_f32_16x16x32_bf16 {d}, {ar(fA(st,mi),4)}, {ar(fB(st,ni),4)}, {d}")
                    else:
                        L.append(f"v_mfma_f32_16x16x32_bf16 {d}, {ar(fB(st,ni),4)}, {ar(fA(st,mi),4)}, {d}")
            return L
        for r in range(NB * 32):
            a(f"v_mov_b32 v{r}, 0")
        a(f"s_waitcnt vmcnt({3*LPS})")
        a("s_barrier")
        for l in reads(0, 0): a(l)
        a(f"s_waitcnt vmcnt({2*LPS}) lgkmcnt(0)")
        a("s_barrier")
        def step(u, do_dma, do_rd, vm, bar=True):
            M = mfmas(u % 2) if not opt.get("g1_nomfma") else ["s_nop 0"] * (NB * 8)
            fill = []
            R = [[x] for x in reads((u + 1) % 4, (u + 1) % 2)] if do_rd else []
            D = dma(u) if do_dma else []
            k = 0
            while R or D:
                if R: fill.append(R.pop(0))
                if R: fill.append(R.pop(0))
                if R and k % 2: fill.append(R.pop(0))
                if D: fill.append(D.pop(0))
                k += 1
            for l in interleave(M, fill, 0, len(M) - 6): a(l)
            if bar:
                a(f"s_waitcnt vmcnt({vm}) lgkmcnt(0)")
                a("s_barrier")
        a(f"s_mov_b32 s{sIt}, 7")
        lp = f"G1_loop_{path}"
        a(".p2align 6")
        a(f"{lp}:")
        for u in range(4):
            step(u, True, True, 2 * LPS)
        a(f"s_sub_u32 s{sIt}, s{sIt}, 1")
        a(f"s_cmp_lg_u32 s{sIt}, 0")
        a(f"s_cbranch_scc1 {lp}")
        step(0, False, True, LPS)
        step(1, False, True, 0)
        step(2, False, True, 0)
        step(3, False, False, 0, bar=False)
        a("s_nop 7")
        def pack(b, scale=None, relu=False, n=8):
            if scale:
                for k in range(n): a(f"v_mul_f32 v{b+k}, s{sTmp+4}, v{b+k}")
            for k in range(n // 2):
                a(f"v_cvt_pk_bf16_f32 v{b+k}, v{b+2*k}, v{b+2*k+1}")
            if relu:
                for k in range(n // 2): a(f"v_pk_max_i16 v{b+k}, v{b+k}, 0")
        if ffn:
            a(f"s_mul_i32 s{sTmp}, s{sCT}, 7")
            a(f"s_add_u32 s{sTmp}, s{sTmp}, 32")
            a(f"s_lshl_b32 s{sTmp}, s{sTmp}, 17")
            a(f"s_lshl_b32 s3, s{sMT}, 14")
            a(f"s_add_u32 s{sTmp}, s{sTmp}, s3")
            a(f"s_lshl_b32 s3, s{sWR}, 13")
            a(f"s_add_u32 s{sTmp}, s{sTmp}, s3")
            a(f"s_lshl_b32 s3, s{sWC}, 19")
            a(f"s_add_u32 s{sTmp+1}, s{sTmp}, s3")
            a(f"s_lshl_b32 s3, s{sWC}, 3")
            a(f"s_add_u32 s{sTmp+2}, s{sTmp}, s3")
            a(f"s_add_u32 s{sTmp+2}, s{sTmp+2}, {3*131072}")
            for mi in range(8):
                for p in range(3):
                    b = acc(mi, 2 * p)
                    pack(b, relu=True)
                    a(f"s_add_u32 s3, s{sTmp+1}, {p*131072 + (mi>>2)*4096}")
                    a(f"buffer_store_dwordx4 {vr(b,4)}, v{vAdma}, s[16:19], s3 offen offset:{(mi&3)*1024}")
                b = acc(mi, 6)
                pack(b, relu=True, n=4)
                a(f"s_add_u32 s3, s{sTmp+2}, {(mi>>2)*4096}")
                a(f"buffer_store_dwordx2 {vr(b,2)}, v{vAdma}, s[16:19], s3 offen offset:{(mi&3)*1024}")
            a("s_endpgm")
        else:
            a(f"s_lshl_b32 s{sTmp}, s{sCT}, 1")
            a(f"s_add_u32 s{sTmp}, s{sTmp}, s{sWC}")
            a(f"s_lshl_b32 s{sTmp}, s{sTmp}, 6")
            a(f"s_lshl_b32 s3, s{sMT}, 3")
            a(f"s_add_u32 s{sTmp}, s{sTmp}, s3")
            a(f"s_lshl_b32 s3, s{sWR}, 2")
            a(f"s_add_u32 s{sTmp}, s{sTmp}, s3")
            a(f"s_lshl_b32 s{sTmp+1}, s{sTmp}, 11")
            a(f"s_lshl_b32 s{sTmp+2}, s{sTmp}, 12")
            a(f"s_mov_b32 s{sTmp+4}, {f32(QSCALE)}")
            a(f"v_lshlrev_b32 v{vt0}, 9, v{vG}")
            a(f"v_lshl_add_u32 v{vE0}, v{vT}, 4, v{vt0}")
            a(f"v_lshrrev_b32 v{vt1}, 3, v{vT}")
            a(f"v_lshl_add_u32 v{vt0}, v{vt1}, 8, v{vt0}")
            a(f"v_and_b32 v{vt1}, 7, v{vT}")
            a(f"v_lshl_add_u32 v{vE1}, v{vt1}, 4, v{vt0}")
            for mi in range(8):
                b = acc(mi, 0)
                pack(b, scale=True)
                a(f"s_add_u32 s3, s{sTmp+1}, {(mi>>1)*2048}")
                a(f"buffer_store_dwordx4 {vr(b,4)}, v{vE0}, s[16:19], s3 offen offset:{(mi&1)*256}")
                b = acc(mi, 2)
                pack(b)
                a(f"s_add_u32 s3, s{sTmp+2}, {(mi>>1)*4096}")
                a(f"buffer_store_dwordx4 {vr(b,4)}, v{vE1}, s[20:23], s3 offen offset:{(mi&1)*128}")
                b = acc((mi >> 1) * 2, 4 + (mi & 1))
                pack(b)
                a(f"buffer_store_dwordx4 {vr(b,4)}, v{vE0}, s[20:23], s3 offen offset:{2048 + (mi&1)*256}")
            a("s_endpgm")
    a("G1_end:")
    a("s_endpgm")
    return kernel_desc("gemm1_kernel", 256 + 128, 256, 48)

def gen_attn(a, opt):
    kernel_begin(a, "attn_kernel")
    a("s_cmp_ge_u32 s2, 256")
    a("s_cbranch_scc1 AT_end")
    a(f"s_load_dwordx2 s[4:5], s[0:1], {KA_WS}")
    S = [0, 16]; CM = [32, 48]; O = [64, 80]; P = [96, 104]; Q = [112, 120]
    K = [128, 136]; V = [144, 152]; L = [160, 164]; SEL = 168
    vLane, vL16, vRd, vRdN, vt0, vt1, vt2, vSt, vX = 172, 173, 174, 175, 176, 177, 178, 179, 180
    sW, sQG, sKH, sHead, sQB = 20, 21, 22, 23, 24
    sOffKV, sM0, sC, sNmax, sTmp, sSlot, sHB = 25, 26, 27, 28, 30, 29, 34
    FLAG = 131072
    a(f"""v_and_b32 v{vLane}, 63, v0
    v_lshrrev_b32 v{vt0}, 6, v0
    v_lshlrev_b32 v{vL16}, 4, v{vLane}
    v_readfirstlane_b32 s{sW}, v{vt0}
    s_and_b32 s3, s2, 7
    s_lshr_b32 s{sTmp}, s2, 3
    s_and_b32 s{sQB}, s{sTmp}, 7
    s_lshr_b32 s{sTmp}, s{sTmp}, 3
    s_lshl_b32 s3, s3, 2
    s_add_u32 s{sHead}, s3, s{sTmp}
    s_and_b32 s{sQG}, s{sW}, 3
    s_lshr_b32 s{sKH}, s{sW}, 2
    s_lshl_b32 s{sHB}, s{sHead}, 18
    s_mov_b32 s{sNmax}, 1
    s_waitcnt lgkmcnt(0)""")
    srd(a, 8, 4, KV_OFF, KV_SZ)
    srd(a, 12, 4, QF_OFF, QF_SZ)
    srd(a, 16, 4, A2_OFF, A2_SZ)
    a(f"""s_lshl_b32 s{sTmp}, s{sHead}, 17
    s_lshl_b32 s3, s{sQB}, 14
    s_add_u32 s{sTmp}, s{sTmp}, s3
    s_lshl_b32 s3, s{sQG}, 12
    s_add_u32 s{sTmp}, s{sTmp}, s3""")
    for x in range(2):
        for kk in range(2):
            a(f"buffer_load_dwordx4 {vr(Q[x]+4*kk,4)}, v{vL16}, s[12:15], s{sTmp} offen offset:{x*2048+kk*1024}")
    a(f"""v_lshrrev_b32 v{vt0}, 4, v{vLane}
    v_lshrrev_b32 v{vt1}, 2, v{vLane}
    v_xor_b32 v{vt0}, v{vt0}, v{vt1}
    v_and_b32 v{vt0}, 1, v{vt0}
    v_cmp_eq_u32 vcc, 0, v{vt0}
    v_mov_b32 v{vt1}, 0x3f803f80
    s_nop 0
    v_cndmask_b32 v{SEL}, 0, v{vt1}, vcc
    v_mov_b32 v{SEL+1}, v{SEL}
    v_mov_b32 v{SEL+2}, v{SEL}
    v_mov_b32 v{SEL+3}, v{SEL}""")
    a("AT_restart:")
    a(f"""s_lshl_b32 s{sOffKV}, s{sKH}, 17
    s_add_u32 s{sOffKV}, s{sOffKV}, s{sHB}
    s_lshl_b32 s3, s{sQG}, 12
    s_add_u32 s{sOffKV}, s{sOffKV}, s3
    s_lshl_b32 s{sM0}, s{sKH}, 16
    s_add_u32 s{sM0}, s{sM0}, s3""")
    def dma(soff):
        return [f"buffer_load_dwordx4 v{vL16}, s[8:11], s{soff} offen offset:{q*1024} lds" for q in range(4)]
    for c in range(3):
        a(f"s_add_u32 m0, s{sM0}, {c*16384}")
        a("s_nop 0")
        for l in dma(sOffKV): a(l)
        a(f"s_add_u32 s{sOffKV}, s{sOffKV}, 0x4000")
    a(f"s_mov_b32 s{sSlot}, {3*16384}")
    a(f"v_mov_b32 v{vt0}, {FLAG}")
    a(f"v_mov_b32 v{vt1}, 0")
    a(f"ds_write_b32 v{vt0}, v{vt1}")
    a(f"v_mov_b32 v{vX}, 0xff800000")
    a(f"v_mov_b32 v{vX+1}, 0xff800000")
    a(f"s_mov_b32 s{sC}, 0")
    a(f"s_mov_b32 s{sTmp}, s{sHB}")
    a("AT_maxloop:")
    for kk in range(2):
        a(f"buffer_load_dwordx4 {vr(K[0]+4*kk,4)}, v{vL16}, s[8:11], s{sTmp} offen offset:{kk*1024}")
    a(f"s_add_u32 s{sTmp}, s{sTmp}, 4096")
    a("s_waitcnt vmcnt(0)")
    for x in range(2):
        a(f"v_mfma_f32_32x32x16_bf16 {vr(S[x],16)}, {vr(K[0],4)}, {vr(Q[x],4)}, 0")
        a(f"v_mfma_f32_32x32x16_bf16 {vr(S[x],16)}, {vr(K[0]+4,4)}, {vr(Q[x]+4,4)}, {vr(S[x],16)}")
    a("s_nop 15")
    for x in range(2):
        for k in range(8):
            a(f"v_max3_f32 v{vX+x}, v{S[x]+2*k}, v{S[x]+2*k+1}, v{vX+x}")
    a(f"s_add_u32 s{sC}, s{sC}, 1")
    a(f"s_cmp_lt_u32 s{sC}, s{sNmax}")
    a("s_cbranch_scc1 AT_maxloop")
    for x in range(2):
        a(f"v_mov_b32 v{vt0}, v{vX+x}")
        a("s_nop 1")
        a(f"v_permlane32_swap_b32 v{vt0}, v{vX+x}")
        a("s_nop 1")
        a(f"v_max_f32 v{vt0}, v{vt0}, v{vX+x}")
        a(f"v_sub_f32 v{vt0}, 0, v{vt0}")
        for k in range(16): a(f"v_mov_b32 v{CM[x]+k}, v{vt0}")
    for x in range(2):
        for k in range(16): a(f"v_mov_b32 v{O[x]+k}, 0")
        for k in range(4): a(f"v_mov_b32 v{L[x]+k}, 0")
    for k in range(8):
        a(f"v_mov_b32 v{P[1]+k}, 0")
        a(f"v_mov_b32 v{V[1]+k}, 0")
    a(f"s_lshl_b32 s3, s{sKH}, 16")
    a(f"v_add_u32 v{vRd}, s3, v{vL16}")
    a(f"v_add_u32 v{vRdN}, 0x4000, v{vRd}")
    a("s_waitcnt vmcnt(0) lgkmcnt(0)")
    a("s_barrier")
    for kk in range(2):
        a(f"ds_read_b128 {vr(K[0]+4*kk,4)}, v{vRd} offset:{kk*1024}")
    a("s_waitcnt lgkmcnt(0)")
    def qk(x, kb):
        return [f"v_mfma_f32_32x32x16_bf16 {vr(S[x],16)}, {vr(K[kb],4)}, {vr(Q[x],4)}, {vr(CM[x],16)}",
                f"v_mfma_f32_32x32x16_bf16 {vr(S[x],16)}, {vr(K[kb]+4,4)}, {vr(Q[x]+4,4)}, {vr(S[x],16)}"]
    def pv(x, vb):
        return [f"v_mfma_f32_32x32x16_bf16 {vr(O[x],16)}, {vr(V[vb]+4*u,4)}, {vr(P[x]+4*u,4)}, {vr(O[x],16)}" for u in range(2)]
    def ls(x):
        return [f"v_mfma_f32_16x16x32_bf16 {vr(L[x],4)}, {vr(SEL,4)}, {vr(P[x]+4*u,4)}, {vr(L[x],4)}" for u in range(2)]
    for l in qk(0, 0): a(l)
    a("s_nop 15")
    def phase(x, kb, vb, extra=()):
        y = 1 - x
        q_, p_, l_ = qk(y, kb), pv(y, vb), ls(y)
        e = [f"v_exp_f32 v{S[x]+k}, v{S[x]+k}" for k in range(16)]
        c = [f"v_cvt_pk_bf16_f32 v{P[x]+k}, v{S[x]+2*k}, v{S[x]+2*k+1}" for k in range(8)]
        ex = list(extra)
        def X(): return [ex.pop(0)] if ex else []
        seq = ([q_[0]] + X() + e[0:3] + [c[0]] + [q_[1]] + X() + e[3:6] + [c[1]] + [p_[0]] + X() + e[6:9] + [c[2]] +
               [l_[0]] + X() + [e[9], c[3]] + [p_[1]] + X() + e[10:13] + [c[4]] + [l_[1]] + X() + e[13:16] + [c[5], c[6], c[7]])
        assert not ex
        for l in seq: a(l)
    a(f"s_mov_b32 s{sC}, 0")
    a(".p2align 6")
    a("AT_loop:")
    a("s_waitcnt vmcnt(4)")
    a("s_barrier")
    a(f"s_cmp_lt_u32 s{sC}, 5")
    a(f"s_cselect_b32 s{sTmp}, s{sOffKV}, 0x80000000")
    a(f"s_add_u32 m0, s{sM0}, s{sSlot}")
    a(f"s_add_u32 s{sOffKV}, s{sOffKV}, 0x4000")
    a(f"s_add_u32 s{sSlot}, s{sSlot}, 0x4000")
    a(f"s_and_b32 s{sSlot}, s{sSlot}, 0xffff")
    for t in range(4):
        kb, kn = t % 2, (t + 1) % 2
        rd = []
        for kk in range(2):
            if t < 3: rd.append(f"ds_read_b128 {vr(K[kn]+4*kk,4)}, v{vRd} offset:{(t+1)*4096+kk*1024}")
            else: rd.append(f"ds_read_b128 {vr(K[kn]+4*kk,4)}, v{vRdN} offset:{kk*1024}")
        for u in range(2):
            rd.append(f"ds_read_b128 {vr(V[kb]+4*u,4)}, v{vRd} offset:{t*4096+2048+u*1024}")
        phase(0, kb, kn, rd)
        a("s_waitcnt lgkmcnt(0)")
        ex = dma(sTmp) if t == 0 else []
        if t == 3:
            ex = [f"v_mov_b32 v{vRd}, v{vRdN}", f"v_add_u32 v{vRdN}, 0x4000, v{vRdN}",
                  f"v_and_b32 v{vRdN}, 0xffff, v{vRdN}", f"v_lshl_or_b32 v{vRdN}, s{sKH}, 16, v{vRdN}"]
        phase(1, kn, kb, ex)
    a(f"s_add_u32 s{sC}, s{sC}, 1")
    a(f"s_cmp_lt_u32 s{sC}, 8")
    a("s_cbranch_scc1 AT_loop")
    a("s_nop 1")
    for l in pv(1, 1) + ls(1): a(l)
    a("s_waitcnt vmcnt(0)")
    a("s_barrier")
    a("s_nop 7")
    a(f"v_max_f32 v{vt0}, v{L[0]}, v{L[1]}")
    a(f"v_add_f32 v{vt1}, v{L[0]}, v{L[1]}")
    a(f"v_mov_b32 v{vt2}, {f32(2.0**29)}")
    a(f"v_cmp_nle_f32 vcc, v{vt1}, v{vt2}")
    a(f"s_cmp_eq_u64 vcc, 0")
    a("s_cbranch_scc1 AT_ok")
    a(f"v_mov_b32 v{vt0}, {FLAG}")
    a(f"v_mov_b32 v{vt1}, 1")
    a(f"ds_write_b32 v{vt0}, v{vt1}")
    a("AT_ok:")
    a(f"s_lshl_b32 s3, s{sW}, 13")
    a(f"v_add_u32 v{vt0}, s3, v{vL16}")
    a(f"s_xor_b32 s3, s{sW}, 4")
    a(f"s_lshl_b32 s3, s3, 13")
    a(f"v_add_u32 v{vt1}, s3, v{vL16}")
    a(f"s_cmp_eq_u32 s{sKH}, 0")
    a("s_cbranch_scc1 AT_x0")
    for j in range(4): a(f"ds_write_b128 v{vt0}, {vr(O[0]+4*j,4)} offset:{j*1024}")
    a(f"ds_write_b128 v{vt0}, {vr(L[0],4)} offset:4096")
    a("s_waitcnt lgkmcnt(0)")
    for k in range(16): a(f"v_mov_b32 v{O[0]+k}, v{O[1]+k}")
    a(f"v_mov_b32 v{L[0]}, v{L[1]}")
    a("s_branch AT_x1")
    a("AT_x0:")
    for j in range(4): a(f"ds_write_b128 v{vt0}, {vr(O[1]+4*j,4)} offset:{j*1024}")
    a(f"ds_write_b128 v{vt0}, {vr(L[1],4)} offset:4096")
    a("s_waitcnt lgkmcnt(0)")
    a("AT_x1:")
    a("s_barrier")
    for j in range(4): a(f"ds_read_b128 {vr(O[1]+4*j,4)}, v{vt1} offset:{j*1024}")
    a(f"ds_read_b128 {vr(L[1],4)}, v{vt1} offset:4096")
    a(f"v_mov_b32 v{vt0}, {FLAG}")
    a(f"ds_read_b32 v{vt2}, v{vt0}")
    a("s_waitcnt lgkmcnt(0)")
    a(f"v_readfirstlane_b32 s3, v{vt2}")
    a(f"s_cmp_eq_u32 s{sNmax}, 1")
    a(f"s_cselect_b32 s3, s3, 0")
    a(f"s_cmp_eq_u32 s3, 0")
    a("s_cbranch_scc1 AT_fin")
    a(f"s_mov_b32 s{sNmax}, 64")
    a("s_barrier")
    a("s_branch AT_restart")
    a("AT_fin:")
    a(f"v_add_f32 v{L[0]}, v{L[0]}, v{L[1]}")
    a(f"v_rcp_f32 v{L[0]}, v{L[0]}")
    for k in range(16): a(f"v_add_f32 v{O[0]+k}, v{O[0]+k}, v{O[1]+k}")
    for k in range(16): a(f"v_mul_f32 v{O[0]+k}, v{O[0]+k}, v{L[0]}")
    o = O[0]
    for ch in range(2):
        for half in range(2):
            j = ch + 2 * half
            a(f"v_cvt_pk_bf16_f32 v{S[0]+4*ch+2*half}, v{o+4*j}, v{o+4*j+1}")
            a(f"v_cvt_pk_bf16_f32 v{S[0]+4*ch+2*half+1}, v{o+4*j+2}, v{o+4*j+3}")
    a(f"""v_bfe_u32 v{vt0}, v{vLane}, 4, 1
    v_lshlrev_b32 v{vt0}, 10, v{vt0}
    v_lshrrev_b32 v{vt1}, 5, v{vLane}
    v_lshl_add_u32 v{vt0}, v{vt1}, 8, v{vt0}
    v_and_b32 v{vt1}, 15, v{vLane}
    v_lshl_add_u32 v{vSt}, v{vt1}, 4, v{vt0}
    s_lshl_b32 s{sTmp}, s{sHead}, 17
    s_lshl_b32 s3, s{sQB}, 14
    s_add_u32 s{sTmp}, s{sTmp}, s3
    s_lshl_b32 s3, s{sQG}, 12
    s_add_u32 s{sTmp}, s{sTmp}, s3
    s_lshl_b32 s3, s{sKH}, 11
    s_add_u32 s{sTmp}, s{sTmp}, s3""")
    for ch in range(2):
        a(f"buffer_store_dwordx4 {vr(S[0]+4*ch,4)}, v{vSt}, s[16:19], s{sTmp} offen offset:{512*ch}")
    a("AT_end:")
    a("s_endpgm")
    return kernel_desc("attn_kernel", 184, 184, 48)

def gen_gemm2(a, opt):
    kernel_begin(a, "gemm2_kernel")
    a("s_cmp_ge_u32 s2, 256")
    a("s_cbranch_scc1 G2_end")
    a(f"s_load_dwordx2 s[4:5], s[0:1], {KA_WO}")
    a(f"s_load_dwordx2 s[6:7], s[0:1], {KA_W2}")
    a(f"s_load_dwordx2 s[24:25], s[0:1], {KA_WS}")
    a(f"s_load_dwordx2 s[40:41], s[0:1], {KA_X}")
    a(f"s_load_dwordx2 s[42:43], s[0:1], {KA_OUT}")
    D = 4
    NSB = 8
    T = 128
    vLane, vG, vT = T, T + 1, T + 2
    vA0, vA1 = T + 3, T + 4
    vBdma = T + 5
    vBrd = T + 9
    vt0, vt1, vt2, vt3 = T + 13, T + 14, T + 15, T + 16
    FB = T + 20
    sW, sMT, sNT, sOffA, sOffB, sM0, sIt, sTmp = 26, 27, 28, 29, 30, 31, 32, 33
    a(f"""v_and_b32 v{vLane}, 63, v0
    v_lshrrev_b32 v{vt0}, 6, v0
    v_lshrrev_b32 v{vG}, 4, v{vLane}
    v_readfirstlane_b32 s{sW}, v{vt0}
    v_and_b32 v{vT}, 15, v{vLane}
    s_and_b32 s3, s2, 7
    s_lshr_b32 s{sTmp}, s2, 3
    s_lshr_b32 s{sMT}, s3, 1
    s_lshl_b32 s{sMT}, s{sMT}, 2
    s_and_b32 s{sNT}, s{sTmp}, 3
    s_add_u32 s{sMT}, s{sMT}, s{sNT}
    s_and_b32 s{sNT}, s3, 1
    s_lshl_b32 s{sNT}, s{sNT}, 3
    s_lshr_b32 s{sTmp}, s{sTmp}, 2
    s_add_u32 s{sNT}, s{sNT}, s{sTmp}
    v_lshlrev_b32 v{vA0}, 4, v{vLane}
    v_add_u32 v{vA1}, 4096, v{vA0}
    s_lshl_b32 s{sOffA}, s{sMT}, 13
    s_lshl_b32 s3, s{sW}, 17
    s_add_u32 s{sOffA}, s{sOffA}, s3
    s_lshl_b32 s{sOffB}, s{sW}, 16
    s_mul_i32 s{sM0}, s{sW}, {NSB*4096}""")
    a(f"""v_lshrrev_b32 v{vt0}, 3, v{vLane}
    v_and_b32 v{vt1}, 7, v{vLane}
    v_and_b32 v{vt2}, 6, v{vt0}
    v_xor_b32 v{vt1}, v{vt1}, v{vt2}
    v_lshlrev_b32 v{vt1}, 4, v{vt1}
    v_lshl_add_u32 v{vt1}, v{vt0}, 11, v{vt1}
    s_lshl_b32 s3, s{sNT}, 7
    v_add_u32 v{vBdma}, s3, v{vt1}""")
    for q in range(1, 4):
        a(f"v_add_u32 v{vBdma+q}, {q*(16384-1024)}, v{vBdma}")
    a(f"""v_lshrrev_b32 v{vt0}, 2, v{vLane}
    v_bfe_u32 v{vt1}, v{vt0}, 1, 2
    v_lshlrev_b32 v{vt0}, 7, v{vt0}
    v_and_b32 v{vt2}, 3, v{vLane}
    v_lshl_add_u32 v{vt0}, v{vt2}, 3, v{vt0}
    v_add_u32 v{vt0}, s{sM0}, v{vt0}""")
    for b in range(4):
        a(f"v_xor_b32 v{vt2}, {b}, v{vt1}")
        a(f"v_lshl_add_u32 v{vBrd+b}, v{vt2}, 5, v{vt0}")
    a("s_waitcnt lgkmcnt(0)")
    srd(a, 8, 24, A2_OFF, A2_SZ)
    srd(a, 12, 4, 0, 1024 * 2048)
    srd(a, 16, 6, 0, 3584 * 2048)
    srd(a, 20, 40, 0, 4 * MB)
    srd(a, 44, 42, 0, 4 * MB)
    def fA(st, mi): return 32 * st + 4 * mi
    def fB(st, ni): return FB + 16 * st + 4 * ni
    def acc(mi, ni): return (mi * 4 + ni) * 4
    def dmaB(j):
        s_ = 12 if j < 8 else 16
        L = [[f"s_add_u32 m0, s{sM0}, {(j%NSB)*4096}", "s_nop 0",
              f"buffer_load_dwordx4 v{vBdma}, s[{s_}:{s_+3}], s{sOffB} offen lds"]]
        for q in range(1, 4):
            L.append([f"buffer_load_dwordx4 v{vBdma+q}, s[{s_}:{s_+3}], s{sOffB} offen offset:{1024*q} lds"])
        if j == 7: L[-1].append(f"s_lshl_b32 s{sOffB}, s{sW}, 16")
        else: L[-1].append(f"s_add_u32 s{sOffB}, s{sOffB}, 0x40000")
        return L
    def ldA(st, mi):
        return f"buffer_load_dwordx4 {ar(fA(st,mi),4)}, v{vA0 if mi<4 else vA1}, s[8:11], s{sOffA} offen offset:{(mi&3)*1024}"
    incA = f"s_add_u32 s{sOffA}, s{sOffA}, 0x80000"
    def rdB(j):
        return [f"ds_read_b64_tr_b16 {vr(fB(j%2,ni)+2*i,2)}, v{vBrd+ni} offset:{(j%NSB)*4096+i*2048}" for ni in range(4) for i in range(2)]
    for g in dmaB(0):
        for l in g: a(l)
    for j in range(D):
        for g in dmaB(j + 1):
            for l in g: a(l)
        for mi in range(8): a(ldA(j % D, mi))
        a(incA)
    for r in range(128): a(f"v_mov_b32 v{r}, 0")
    a(f"s_waitcnt vmcnt({12*D})")
    for l in rdB(0): a(l)
    NST = 36
    def step(i):
        rem_groups = min(D - 1, NST - 1 - i)
        cnt = 0
        for j in range(i + 1, min(i + D, NST)):
            cnt += 8 + (4 if j + 1 < NST else 0)
        a(f"s_waitcnt vmcnt({cnt}) lgkmcnt(0)")
        M = []
        nj = i + D
        Bd = dmaB(nj + 1) if nj + 1 < NST else []
        R = rdB(i + 1) if i + 1 < NST else []
        for mi in range(8):
            for ni in range(4):
                d = vr(acc(mi, ni), 4)
                if opt.get("g2_nomfma"): a("s_nop 0")
                else: a(f"v_mfma_f32_16x16x32_bf16 {d}, {vr(fB(i%2,ni),4)}, {ar(fA(i%D,mi),4)}, {d}")
                if mi == 0 and Bd:
                    for l in Bd[ni]: a(l)
                elif mi >= 1 and ni % 2 == 1 and R:
                    a(R.pop(0))
                if mi >= 1 and ni == 0 and nj < NST:
                    a(ldA(nj % D, mi - 1))
        if nj < NST:
            a(ldA(nj % D, 7))
            a(incA)
    for i in range(8): step(i)
    a(f"s_mov_b32 s{sIt}, 2")
    a(".p2align 6")
    a("G2_loop:")
    for i in range(8, 16): step(i)
    a(f"s_sub_u32 s{sIt}, s{sIt}, 1")
    a(f"s_cmp_lg_u32 s{sIt}, 0")
    a("s_cbranch_scc1 G2_loop")
    for i in range(24, 36): step(i)
    a("s_barrier")
    a(f"""s_lshl_b32 s3, s{sW}, 6
    v_add_u32 v{vt0}, s3, v{vLane}
    v_lshrrev_b32 v{vt1}, 3, v{vt0}
    v_and_b32 v{vt2}, 7, v{vt0}
    v_lshlrev_b32 v{vA0}, 11, v{vt1}
    v_lshl_add_u32 v{vA0}, v{vt2}, 4, v{vA0}
    s_lshl_b32 s{sTmp}, s{sMT}, 18
    s_lshl_b32 s3, s{sNT}, 7
    s_add_u32 s{sTmp}, s{sTmp}, s3""")
    XR = FB
    for it in range(4):
        a(f"s_add_u32 s3, s{sTmp}, {it*32*2048}")
        a(f"buffer_load_dwordx4 {vr(XR+4*it,4)}, v{vA0}, s[20:23], s3 offen")
    a(f"""v_and_b32 v{vt3}, 15, v{vt1}
    v_lshlrev_b32 v{vt2}, 1, v{vt2}
    v_xor_b32 v{vt2}, v{vt2}, v{vt3}
    v_lshlrev_b32 v{vt1}, 8, v{vt1}
    v_lshl_add_u32 v{vBrd}, v{vt2}, 4, v{vt1}
    v_xor_b32 v{vBrd+1}, 16, v{vBrd}
    v_add_u32 v{vBrd+2}, 0x10000, v{vBrd}
    v_add_u32 v{vBrd+3}, 0x10000, v{vBrd+1}""")
    a(f"s_lshl_b32 s3, s{sW}, 15")
    a(f"v_lshlrev_b32 v{vt0}, 8, v{vT}")
    a(f"v_add_u32 v{vt0}, s3, v{vt0}")
    for ni in range(4):
        a(f"v_or_b32 v{vt1}, {4*ni}, v{vG}")
        a(f"v_xor_b32 v{vt1}, v{vt1}, v{vT}")
        a(f"v_lshl_add_u32 v{vBdma+ni}, v{vt1}, 4, v{vt0}")
    for mi in range(8):
        for ni in range(4):
            a(f"ds_write_b128 v{vBdma+ni}, {vr(acc(mi,ni),4)} offset:{mi*4096}")
    a("s_waitcnt lgkmcnt(0)")
    a("s_barrier")
    for it in range(4):
        for w in range(4):
            for hf in range(2):
                a(f"ds_read_b128 {vr(32*it+8*w+4*hf,4)}, v{vBrd+hf+2*(w>>1)} offset:{(w&1)*32768+it*8192}")
    a("s_mov_b32 s3, 0xffff0000")
    a("s_waitcnt vmcnt(0)")
    for it in range(4):
        a(f"s_waitcnt lgkmcnt({min(15, 8*(3-it))})" if it < 2 else f"s_waitcnt lgkmcnt({8*(3-it)})")
        if it < 2: a(f"s_waitcnt lgkmcnt(8)") if False else None
        b = 32 * it
        for k in range(8):
            a(f"v_add_f32 v{b+k}, v{b+k}, v{b+8+k}")
            a(f"v_add_f32 v{b+16+k}, v{b+16+k}, v{b+24+k}")
        for k in range(4):
            a(f"v_lshlrev_b32 v{b+8+2*k}, 16, v{XR+4*it+k}")
            a(f"v_and_b32 v{b+9+2*k}, s3, v{XR+4*it+k}")
        for k in range(8):
            a(f"v_add_f32 v{b+k}, v{b+k}, v{b+16+k}")
        for k in range(8):
            a(f"v_add_f32 v{b+k}, v{b+k}, v{b+8+k}")
        for k in range(4):
            a(f"v_cvt_pk_bf16_f32 v{b+k}, v{b+2*k}, v{b+2*k+1}")
        a(f"s_add_u32 s{sIt}, s{sTmp}, {it*32*2048}")
        a(f"buffer_store_dwordx4 {vr(b,4)}, v{vA0}, s[44:47], s{sIt} offen")
    a("G2_end:")
    a("s_endpgm")
    return kernel_desc("gemm2_kernel", 184 + 128, 184, 56)

HEADER = open("cdna_kernels/" + NAME + ".s.ref").read().split("; Override launch")[0]

def build(opt=None):
    opt = opt or {}
    a = Asm()
    launches = [("ln_kernel", 256, 256, 1024), ("gemm1_kernel", 256, 256, 131072),
                ("attn_kernel", 256, 512, 131072 + 64), ("gemm2_kernel", 256, 256, 131072)]
    head = HEADER + "".join(f"; @launch kernel={k} grid=({g},1,1) block=({b},1,1) lds={l}\n" for k, g, b, l in launches)
    a('.amdgcn_target "amdgcn-amd-amdhsa--gfx950"')
    a(".text")
    descs = [gen_ln(a), gen_gemm1(a, opt), gen_attn(a, opt), gen_gemm2(a, opt)]
    return head + a.text() + '.section .rodata,"a"\n' + "".join(descs)

if __name__ == "__main__":
    out = sys.argv[1] if len(sys.argv) > 1 else "cdna_kernels/" + NAME + ".s"
    opt = dict(kv.split("=") for kv in sys.argv[2:])
    open(out, "w").write(build(opt))
```

```python
import sys, math
from asmlib import *

NAME = "parallel_sum__softmax_full_mha__dense_activation_relu__prompt"
KA_X, KA_WQKV, KA_WO, KA_BX, KA_W1, KA_W2, KA_OUT, KA_DBG, KA_WS = 0, 8, 16, 24, 32, 40, 48, 56, 64
MB = 1 << 20
XN_OFF, XN_SZ = 0, 4 * MB
QF_OFF, QF_SZ = 4 * MB, 4 * MB
KV_OFF, KV_SZ = 8 * MB, 8 * MB
A2_OFF, A2_SZ = 16 * MB, 144 * 131072
QSCALE = (32 ** -0.5) * math.log2(math.e)
import struct
def f32(x): return hex(struct.unpack("<I", struct.pack("<f", x))[0])

STAMP_OFF = 64 * MB
def stamp(a, opt, i):
    if not opt.get("stamp"): return
    a(f"s_memtime s[{64+4*i}:{65+4*i}]")
    a(f"s_memrealtime s[{66+4*i}:{67+4*i}]")
    a("s_waitcnt lgkmcnt(0)")
def stamp_out(a, opt, kid, n, wave_sgpr):
    if not opt.get("stamp"): return
    stamp(a, opt, n - 1)
    if opt.get("stamp") == "dbg":
        lab = a.label("SD")
        a(f"s_load_dwordx2 s[96:97], s[0:1], {KA_DBG}")
        a("s_waitcnt lgkmcnt(0) vmcnt(0)")
        a(f"s_add_u32 s96, s96, {512*(3-kid)}")
        a(f"s_addc_u32 s97, s97, 0")
        srd(a, 92, 96, 0, 256)
        a(f"s_cmp_lg_u32 s2, 255")
        a(f"s_cbranch_scc1 {lab}")
        a(f"s_cmp_lg_u32 s{wave_sgpr}, 0")
        a(f"s_cbranch_scc1 {lab}")
        a("v_mov_b32 v0, 0")
        for j, i in enumerate((0, 1, 2, n - 1) if n > 2 else (0, 0, 0, n - 1)):
            a(f"v_mov_b32 v{4+j}, s{66+4*i}")
        a(f"buffer_store_dwordx4 v[4:7], v0, s[92:95], 0 offen offset:{16*kid}")
        a(f"{lab}:")
        return
    a(f"s_load_dwordx2 s[96:97], s[0:1], {KA_WS}")
    a("s_waitcnt lgkmcnt(0) vmcnt(0)")
    srd(a, 92, 96, STAMP_OFF + kid * MB, MB)
    a(f"s_lshl_b32 s98, s2, 4")
    a(f"s_add_u32 s98, s98, s{wave_sgpr}")
    a(f"s_lshl_b32 s98, s98, 6")
    a("v_mov_b32 v0, 0")
    for i in range(n):
        a(f"v_mov_b32 v2, s{64+4*i}")
        a(f"v_mov_b32 v3, s{66+4*i}")
        a(f"buffer_store_dwordx2 v[2:3], v0, s[92:95], s98 offen offset:{8*i}")
        a("s_nop 1")
def gen_ln(a, opt):
    kernel_begin(a, "ln_kernel")
    a("s_cmp_ge_u32 s2, 256")
    a("s_cbranch_scc1 LN_end")
    stamp(a, opt, 0)
    a(f"s_load_dwordx2 s[4:5], s[0:1], {KA_X}")
    a(f"s_load_dwordx2 s[6:7], s[0:1], {KA_WS}")
    a("""v_and_b32 v1, 63, v0
    v_lshrrev_b32 v2, 6, v0
    v_lshrrev_b32 v3, 3, v1
    v_and_b32 v4, 7, v1
    s_lshl_b32 s3, s2, 14
    v_lshlrev_b32 v5, 11, v3
    v_lshl_add_u32 v5, v2, 9, v5
    v_lshl_add_u32 v5, v4, 4, v5
    s_waitcnt lgkmcnt(0)""")
    srd(a, 8, 4, 0, 4 * MB)
    srd(a, 12, 6, XN_OFF, XN_SZ)
    for i in range(4):
        a(f"buffer_load_dwordx4 v[{8+4*i}:{11+4*i}], v5, s[8:11], s3 offen offset:{128*i}")
    a("""v_lshrrev_b32 v6, 2, v4
    v_lshl_add_u32 v6, v2, 3, v6
    v_lshlrev_b32 v6, 17, v6
    v_and_b32 v7, 3, v4
    v_lshl_add_u32 v6, v7, 8, v6
    v_lshl_add_u32 v6, v3, 4, v6
    s_lshr_b32 s16, s2, 1
    s_lshl_b32 s16, s16, 10
    s_and_b32 s17, s2, 1
    s_lshl_b32 s17, s17, 7
    s_add_u32 s16, s16, s17
    s_add_u32 s17, s16, 0x40000
    s_add_u32 s18, s16, 0x80000
    s_add_u32 s19, s16, 0xc0000
    v_lshlrev_b32 v60, 3, v3
    v_lshl_add_u32 v61, v2, 6, v60
    s_mov_b32 s20, 0xffff0000""")
    for i in range(4):
        a(f"s_waitcnt vmcnt({3-i})")
        for j in range(4 * i, 4 * i + 4):
            a(f"v_lshlrev_b32 v{24+2*j}, 16, v{8+j}")
            a(f"v_and_b32 v{25+2*j}, s20, v{8+j}")
    for p in range(4):
        a(f"v_add_f32 v{56+p}, v{24+8*p}, v{25+8*p}")
    for k in range(2, 8):
        for p in range(4):
            a(f"v_add_f32 v{56+p}, v{56+p}, v{24+8*p+k}")
    def red(reg):
        a(f"v_add_f32 v56, v56, v57\nv_add_f32 v58, v58, v59\nv_add_f32 v{reg}, v56, v58")
        for d in ("quad_perm:[1,0,3,2]", "quad_perm:[2,3,0,1]", "row_half_mirror"):
            a("s_nop 1")
            a(f"v_add_f32_dpp v{reg}, v{reg}, v{reg} {d} row_mask:0xf bank_mask:0xf")
    red(62)
    a(f"v_mul_f32 v62, {f32(1/256)}, v62")
    for p in range(4):
        a(f"v_mov_b32 v{56+p}, 0")
    for k in range(8):
        for p in range(4):
            a(f"v_sub_f32 v{8+p}, v{24+8*p+k}, v62")
        for p in range(4):
            a(f"v_fmac_f32 v{56+p}, v{8+p}, v{8+p}")
    red(63)
    a("ds_write_b64 v61, v[62:63]")
    a("s_waitcnt lgkmcnt(0)")
    a("s_barrier")
    for w in range(4):
        a(f"ds_read_b64 v[{8+2*w}:{9+2*w}], v60 offset:{64*w}")
    a("s_waitcnt lgkmcnt(0)")
    a("""v_add_f32 v16, v8, v10
    v_add_f32 v17, v12, v14
    v_add_f32 v16, v16, v17
    v_mul_f32 v16, 0.25, v16
    v_add_f32 v17, v9, v11
    v_add_f32 v18, v13, v15
    v_add_f32 v17, v17, v18
    v_sub_f32 v8, v8, v16
    v_sub_f32 v10, v10, v16
    v_sub_f32 v12, v12, v16
    v_sub_f32 v14, v14, v16
    v_mul_f32 v18, v8, v8
    v_fmac_f32 v18, v10, v10
    v_fmac_f32 v18, v12, v12
    v_fmac_f32 v18, v14, v14
    v_mul_f32 v18, 0.25, v18""")
    a(f"v_fmac_f32 v18, {f32(1/1024)}, v17")
    a("""v_cvt_pk_bf16_f32 v16, v16, v16
    v_cvt_pk_bf16_f32 v18, v18, v18
    v_lshlrev_b32 v16, 16, v16
    v_lshlrev_b32 v18, 16, v18""")
    a(f"v_add_f32 v18, {f32(1e-5)}, v18")
    a("""v_cvt_pk_bf16_f32 v18, v18, v18
    v_lshlrev_b32 v18, 16, v18
    v_sqrt_f32 v18, v18
    s_nop 0
    v_cvt_pk_bf16_f32 v18, v18, v18
    v_lshlrev_b32 v18, 16, v18
    v_rcp_f32 v18, v18""")
    for i in range(4):
        for j in range(4 * i, 4 * i + 4):
            x0, x1 = 24 + 2 * j, 25 + 2 * j
            a(f"v_sub_f32 v{x0}, v{x0}, v16\nv_sub_f32 v{x1}, v{x1}, v16")
        for j in range(4 * i, 4 * i + 4):
            x0, x1 = 24 + 2 * j, 25 + 2 * j
            a(f"v_cvt_pk_bf16_f32 v{x1}, v{x0}, v{x1}")
        for j in range(4 * i, 4 * i + 4):
            x0, x1 = 24 + 2 * j, 25 + 2 * j
            a(f"v_lshlrev_b32 v{x0}, 16, v{x1}\nv_and_b32 v{x1}, s20, v{x1}")
        for j in range(4 * i, 4 * i + 4):
            x0, x1 = 24 + 2 * j, 25 + 2 * j
            a(f"v_mul_f32 v{x0}, v{x0}, v18\nv_mul_f32 v{x1}, v{x1}, v18")
        for j in range(4 * i, 4 * i + 4):
            x0, x1 = 24 + 2 * j, 25 + 2 * j
            a(f"v_cvt_pk_bf16_f32 v{64+j}, v{x0}, v{x1}")
        a(f"buffer_store_dwordx4 v[{64+4*i}:{67+4*i}], v6, s[12:15], s{16+i} offen")
    if opt.get("stamp"):
        a("v_readfirstlane_b32 s21, v2")
        a("s_waitcnt vmcnt(0)")
    stamp_out(a, opt, 0, 2, 21)
    a("LN_end:")
    a("s_endpgm")
    return kernel_desc("ln_kernel", 80, 80, 102 if opt.get("stamp") else 32)

def gen_gemm1(a, opt):
    kernel_begin(a, "gemm1_kernel")
    a("s_cmp_ge_u32 s2, 256")
    a("s_cbranch_scc1 G1_end")
    stamp(a, opt, 0)
    a(f"s_load_dwordx2 s[4:5], s[0:1], {KA_WQKV}")
    a(f"s_load_dwordx2 s[6:7], s[0:1], {KA_W1}")
    a(f"s_load_dwordx2 s[24:25], s[0:1], {KA_WS}")
    T = 224
    vLane, vG, vT = T, T + 1, T + 2
    vArd = T + 3
    vBrd = T + 5
    vAdma = T + 11
    vBdma = T + 12
    vt0, vt1, vt2, vt3 = T + 16, T + 17, T + 18, T + 19
    vE0, vE1, vE2 = T + 20, T + 21, T + 22
    sW, sWR, sWC, sMT, sCT = 26, 27, 28, 29, 30
    sOffA, sOffB, sM0A, sM0B, sIt = 31, 32, 33, 34, 35
    sTmp = 36
    a(f"""v_and_b32 v{vLane}, 63, v0
    v_lshrrev_b32 v{vt0}, 6, v0
    v_lshrrev_b32 v{vG}, 4, v{vLane}
    v_readfirstlane_b32 s{sW}, v{vt0}
    v_and_b32 v{vT}, 15, v{vLane}
    s_and_b32 s3, s2, 7
    s_lshr_b32 s{sTmp}, s2, 3
    s_and_b32 s{sMT}, s{sTmp}, 7
    s_lshr_b32 s{sTmp}, s{sTmp}, 3
    s_and_b32 s{sCT}, s{sTmp}, 1
    s_lshl_b32 s3, s3, 1
    s_add_u32 s{sCT}, s{sCT}, s3
    s_lshr_b32 s{sWR}, s{sW}, 1
    s_and_b32 s{sWC}, s{sW}, 1
    v_lshlrev_b32 v{vAdma}, 4, v{vLane}
    s_lshl_b32 s{sOffA}, s{sMT}, 14
    s_lshl_b32 s{sM0A}, s{sW}, 12
    s_add_u32 s{sOffA}, s{sOffA}, s{sM0A}
    s_mov_b32 s{sOffB}, 0
    s_lshl_b32 s3, s{sWR}, 13
    v_add_u32 v{vArd}, s3, v{vAdma}
    v_add_u32 v{vArd+1}, 0x10000, v{vArd}
    s_waitcnt lgkmcnt(0)""")
    srd(a, 8, 24, XN_OFF, XN_SZ)
    a(f"s_cmp_ge_u32 s{sTmp}, 2")
    a("s_cbranch_scc1 G1_ffn")

    for path in ("qkv", "ffn"):
        ffn = path == "ffn"
        NB = 7 if ffn else 6
        CPR = 28 if ffn else 24
        PITCH = CPR * 16
        PPW = 4 if ffn else 3
        WP = 7168 if ffn else 6144
        LPS = 4 + PPW
        MAGIC = -(-65536 // CPR)
        assert all((p * MAGIC) >> 16 == p // CPR for p in range(1024))
        if ffn:
            a("G1_ffn:")
            srd(a, 12, 6, 0, 1024 * WP)
            srd(a, 16, 24, A2_OFF, A2_SZ)
        else:
            srd(a, 12, 4, 0, 1024 * WP)
            srd(a, 16, 24, QF_OFF, QF_SZ)
            srd(a, 20, 24, KV_OFF, KV_SZ)
        a(f"s_mul_i32 s{sM0B}, s{sW}, {PPW*1024}")
        a(f"s_add_u32 s{sM0B}, s{sM0B}, 0x4000")
        a(f"s_mul_i32 s{sTmp}, s{sCT}, {448 if ffn else 128}")
        a(f"s_mul_i32 s3, s{sW}, {PPW*64}")
        a(f"s_mov_b32 s{sTmp+1}, {MAGIC}")
        a(f"s_mov_b32 s{sTmp+2}, {WP}")
        for q in range(PPW):
            d = vBdma + q
            a(f"v_add_u32 v{vt0}, s3, v{vLane}")
            if q: a(f"v_add_u32 v{vt0}, {64*q}, v{vt0}")
            a(f"v_mul_lo_u32 v{vt1}, v{vt0}, s{sTmp+1}")
            a(f"v_lshrrev_b32 v{vt1}, 16, v{vt1}")
            a(f"v_mul_u32_u24 v{vt2}, {CPR}, v{vt1}")
            a(f"v_sub_u32 v{vt0}, v{vt0}, v{vt2}")
            if ffn:
                a(f"v_bfe_u32 v{vt2}, v{vt1}, 3, 1")
                a(f"v_lshlrev_b32 v{vt2}, 1, v{vt2}")
                a(f"v_xor_b32 v{vt0}, v{vt0}, v{vt2}")
                a(f"v_lshlrev_b32 v{vt0}, 4, v{vt0}")
            else:
                a(f"v_and_b32 v{vt2}, 2, v{vt1}")
                a(f"v_bfe_u32 v{vt3}, v{vt1}, 3, 1")
                a(f"v_lshl_or_b32 v{vt2}, v{vt3}, 2, v{vt2}")
                a(f"v_xor_b32 v{vt0}, v{vt0}, v{vt2}")
                a(f"v_lshrrev_b32 v{vt2}, 3, v{vt0}")
                a(f"v_and_b32 v{vt0}, 7, v{vt0}")
                a(f"v_lshlrev_b32 v{vt0}, 4, v{vt0}")
                a(f"v_lshl_add_u32 v{vt0}, v{vt2}, 11, v{vt0}")
            a(f"v_mul_lo_u32 v{vt2}, v{vt1}, s{sTmp+2}")
            a(f"v_add3_u32 v{d}, v{vt2}, v{vt0}, s{sTmp}")
            if q: a(f"v_subrev_u32 v{d}, {1024*q}, v{d}")
            if ffn:
                a(f"v_cmp_lt_u32 vcc, 31, v{vt1}")
                a(f"v_mov_b32 v{vt2}, 0x80000000")
                a("s_nop 0")
                a(f"v_cndmask_b32 v{d}, v{d}, v{vt2}, vcc")
        def dma(slot):
            L = [[f"s_add_u32 m0, s{sM0A}, {slot*32768}",
                  f"s_nop 0",
                  f"buffer_load_dwordx4 v{vAdma}, s[8:11], s{sOffA} offen lds"]]
            for q in range(1, 4):
                L.append([f"buffer_load_dwordx4 v{vAdma}, s[8:11], s{sOffA} offen offset:{1024*q} lds"])
            L[-1].append(f"s_add_u32 s{sOffA}, s{sOffA}, 0x20000")
            L.append([f"s_add_u32 m0, s{sM0B}, {slot*32768}", "s_nop 0",
                      f"buffer_load_dwordx4 v{vBdma}, s[12:15], s{sOffB} offen lds"])
            for q in range(1, PPW):
                L.append([f"buffer_load_dwordx4 v{vBdma+q}, s[12:15], s{sOffB} offen offset:{1024*q} lds"])
            L[-1].append(f"s_add_u32 s{sOffB}, s{sOffB}, {32*WP}")
            return L
        for s in range(4):
            for g in dma(s):
                for l in g: a(l)
        a(f"v_lshrrev_b32 v{vt0}, 2, v{vT}")
        a(f"v_lshl_add_u32 v{vt1}, v{vG}, 3, v{vt0}")
        a(f"v_mul_u32_u24 v{vt1}, {PITCH}, v{vt1}")
        a(f"v_and_b32 v{vt2}, 3, v{vLane}")
        a(f"v_lshl_add_u32 v{vt1}, v{vt2}, 3, v{vt1}")
        a(f"v_and_b32 v{vt2}, 1, v{vG}")
        if ffn:
            a(f"v_lshlrev_b32 v{vt3}, 5, v{vt2}")
            a(f"s_lshl_b32 s3, s{sWC}, 8")
            a(f"v_add3_u32 v{vBrd}, v{vt1}, v{vt3}, s3")
            a(f"v_sub_u32 v{vBrd+1}, v{vt1}, v{vt3}")
            a(f"v_add_u32 v{vBrd+1}, s3, v{vBrd+1}")
            a(f"s_add_u32 s3, s{sWC}, 6")
            a(f"v_xor_b32 v{vt3}, s3, v{vt2}")
            a(f"v_lshl_add_u32 v{vBrd+2}, v{vt3}, 5, v{vt1}")
            nb_ = 3
        else:
            a(f"v_lshrrev_b32 v{vt0}, 1, v{vt0}")
            a(f"v_lshl_or_b32 v{vt0}, v{vt2}, 1, v{vt0}")
            a(f"s_lshl_b32 s3, s{sWC}, 1")
            a(f"v_xor_b32 v{vt3}, s3, v{vt0}")
            a(f"v_lshl_add_u32 v{vBrd}, v{vt3}, 5, v{vt1}")
            a(f"v_xor_b32 v{vt3}, 1, v{vt3}")
            a(f"v_lshl_add_u32 v{vBrd+1}, v{vt3}, 5, v{vt1}")
            nb_ = 2
        for i in range(nb_):
            a(f"v_add_u32 v{vBrd+3+i}, 0x10000, v{vBrd+i}")
        def fA(st, mi): return 64 * st + 4 * mi
        def fB(st, ni): return 64 * st + 32 + 4 * ni
        def reads(slot, st):
            hi = slot >> 1
            so = (slot & 1) * 32768
            LA = [f"ds_read_b128 {ar(fA(st,mi),4)}, v{vArd+hi} offset:{so+1024*mi}" for mi in range(8)]
            LB = []
            for ni in range(NB):
                for i in range(2):
                    if ffn:
                        if ni < 6: base, off = vBrd + (ni & 1), 32 * ni
                        else: base, off = vBrd + 2, 0
                    else:
                        base, off = vBrd + (ni & 1), 128 * (ni >> 1)
                    LB.append(f"ds_read_b64_tr_b16 {ar(fB(st,ni)+2*i,2)}, v{base+3*hi} offset:{so+16384+i*4*PITCH+off}")
            out = []
            while LA or LB:
                if LB: out.append(LB.pop(0))
                if LB: out.append(LB.pop(0))
                if LA: out.append(LA.pop(0))
            return out
        def acc(mi, ni):
            if ffn:
                return (mi * 7 + ni) * 4
            if ni < 4: return (mi * 4 + ni) * 4
            return 128 + (((mi >> 1) * 2 + (ni - 4)) * 2 + (mi & 1)) * 4
        def mfmas(st):
            L = []
            for ni in range(NB):
                for mi in range(8):
                    d = vr(acc(mi, ni), 4)
                    if (not ffn) and ni >= 4:
                        L.append(f"v_mfma_f32_16x16x32_bf16 {d}, {ar(fA(st,mi),4)}, {ar(fB(st,ni),4)}, {d}")
                    else:
                        L.append(f"v_mfma_f32_16x16x32_bf16 {d}, {ar(fB(st,ni),4)}, {ar(fA(st,mi),4)}, {d}")
            return L
        for r in range(NB * 32):
            a(f"v_mov_b32 v{r}, 0")
        a(f"s_waitcnt vmcnt({3*LPS})")
        a("s_barrier")
        for l in reads(0, 0): a(l)
        a(f"s_waitcnt vmcnt({2*LPS}) lgkmcnt(0)")
        a("s_barrier")
        def step(u, do_dma, do_rd, vm, bar=True):
            M = mfmas(u % 2) if not opt.get("g1_nomfma") else ["s_nop 0"] * (NB * 8)
            fill = []
            R = [[x] for x in reads((u + 1) % 4, (u + 1) % 2)] if do_rd else []
            D = dma(u) if do_dma else []
            k = 0
            while R or D:
                if R: fill.append(R.pop(0))
                if R: fill.append(R.pop(0))
                if R and k % 2: fill.append(R.pop(0))
                if D: fill.append(D.pop(0))
                k += 1
            for l in interleave(M, fill, 0, len(M) - 6): a(l)
            if bar:
                a(f"s_waitcnt vmcnt({vm}) lgkmcnt(0)")
                a("s_barrier")
        stamp(a, opt, 1)
        a(f"s_mov_b32 s{sIt}, 7")
        lp = f"G1_loop_{path}"
        a(".p2align 6")
        a(f"{lp}:")
        for u in range(4):
            step(u, True, True, 2 * LPS)
        a(f"s_sub_u32 s{sIt}, s{sIt}, 1")
        a(f"s_cmp_lg_u32 s{sIt}, 0")
        a(f"s_cbranch_scc1 {lp}")
        step(0, False, True, LPS)
        step(1, False, True, 0)
        step(2, False, True, 0)
        step(3, False, False, 0, bar=False)
        a("s_nop 7")
        stamp(a, opt, 2)
        def pack(b, scale=None, relu=False, n=8):
            if scale:
                for k in range(n): a(f"v_mul_f32 v{b+k}, s{sTmp+4}, v{b+k}")
            for k in range(n // 2):
                a(f"v_cvt_pk_bf16_f32 v{b+k}, v{b+2*k}, v{b+2*k+1}")
            if relu:
                for k in range(n // 2): a(f"v_pk_max_i16 v{b+k}, v{b+k}, 0")
        if ffn:
            a(f"s_mul_i32 s{sTmp}, s{sCT}, 7")
            a(f"s_add_u32 s{sTmp}, s{sTmp}, 32")
            a(f"s_lshl_b32 s{sTmp}, s{sTmp}, 17")
            a(f"s_lshl_b32 s3, s{sMT}, 14")
            a(f"s_add_u32 s{sTmp}, s{sTmp}, s3")
            a(f"s_lshl_b32 s3, s{sWR}, 13")
            a(f"s_add_u32 s{sTmp}, s{sTmp}, s3")
            a(f"s_lshl_b32 s3, s{sWC}, 19")
            a(f"s_add_u32 s{sTmp+1}, s{sTmp}, s3")
            a(f"s_lshl_b32 s3, s{sWC}, 3")
            a(f"s_add_u32 s{sTmp+2}, s{sTmp}, s3")
            a(f"s_add_u32 s{sTmp+2}, s{sTmp+2}, {3*131072}")
            for mi in range(8):
                for p in range(3):
                    b = acc(mi, 2 * p)
                    pack(b, relu=True)
                    a(f"s_add_u32 s3, s{sTmp+1}, {p*131072 + (mi>>2)*4096}")
                    a(f"buffer_store_dwordx4 {vr(b,4)}, v{vAdma}, s[16:19], s3 offen offset:{(mi&3)*1024}")
                b = acc(mi, 6)
                pack(b, relu=True, n=4)
                a(f"s_add_u32 s3, s{sTmp+2}, {(mi>>2)*4096}")
                a(f"buffer_store_dwordx2 {vr(b,2)}, v{vAdma}, s[16:19], s3 offen offset:{(mi&3)*1024}")
            stamp(a, opt, 3)
            if opt.get("stamp"): a("s_waitcnt vmcnt(0)")
            stamp_out(a, opt, 1, 5, sW)
            a("s_endpgm")
        else:
            a(f"s_lshl_b32 s{sTmp}, s{sCT}, 1")
            a(f"s_add_u32 s{sTmp}, s{sTmp}, s{sWC}")
            a(f"s_lshl_b32 s{sTmp}, s{sTmp}, 6")
            a(f"s_lshl_b32 s3, s{sMT}, 3")
            a(f"s_add_u32 s{sTmp}, s{sTmp}, s3")
            a(f"s_lshl_b32 s3, s{sWR}, 2")
            a(f"s_add_u32 s{sTmp}, s{sTmp}, s3")
            a(f"s_lshl_b32 s{sTmp+1}, s{sTmp}, 11")
            a(f"s_lshl_b32 s{sTmp+2}, s{sTmp}, 12")
            a(f"s_mov_b32 s{sTmp+4}, {f32(QSCALE)}")
            a(f"v_lshlrev_b32 v{vt0}, 9, v{vG}")
            a(f"v_lshl_add_u32 v{vE0}, v{vT}, 4, v{vt0}")
            a(f"v_lshrrev_b32 v{vt1}, 3, v{vT}")
            a(f"v_lshl_add_u32 v{vt0}, v{vt1}, 8, v{vt0}")
            a(f"v_and_b32 v{vt1}, 7, v{vT}")
            a(f"v_lshl_add_u32 v{vE1}, v{vt1}, 4, v{vt0}")
            for mi in range(8):
                b = acc(mi, 0)
                pack(b, scale=True)
                a(f"s_add_u32 s3, s{sTmp+1}, {(mi>>1)*2048}")
                a(f"buffer_store_dwordx4 {vr(b,4)}, v{vE0}, s[16:19], s3 offen offset:{(mi&1)*256}")
                b = acc(mi, 2)
                pack(b)
                a(f"s_add_u32 s3, s{sTmp+2}, {(mi>>1)*4096}")
                a(f"buffer_store_dwordx4 {vr(b,4)}, v{vE1}, s[20:23], s3 offen offset:{(mi&1)*128}")
                b = acc((mi >> 1) * 2, 4 + (mi & 1))
                pack(b)
                a(f"buffer_store_dwordx4 {vr(b,4)}, v{vE0}, s[20:23], s3 offen offset:{2048 + (mi&1)*256}")
            stamp(a, opt, 3)
            if opt.get("stamp"): a("s_waitcnt vmcnt(0)")
            stamp_out(a, opt, 1, 5, sW)
            a("s_endpgm")
    a("G1_end:")
    a("s_endpgm")
    return kernel_desc("gemm1_kernel", 256 + 128, 256, 102 if opt.get("stamp") else 48)

def gen_attn(a, opt):
    kernel_begin(a, "attn_kernel")
    a("s_cmp_ge_u32 s2, 256")
    a("s_cbranch_scc1 AT_end")
    stamp(a, opt, 0)
    a(f"s_load_dwordx2 s[4:5], s[0:1], {KA_WS}")
    S = [0, 16]; CM = [32, 48]; O = [64, 80]; P = [96, 104]; Q = [112, 120]
    K = [128, 136]; V = [144, 152]; L = [160, 164]; SEL = 168
    vLane, vL16, vRd, vRdN, vt0, vt1, vt2, vSt, vX = 172, 173, 174, 175, 176, 177, 178, 179, 180
    sW, sQG, sKH, sHead, sQB = 20, 21, 22, 23, 24
    sOffKV, sM0, sC, sNmax, sTmp, sSlot, sHB = 25, 26, 27, 28, 30, 29, 34
    FLAG = 131072
    a(f"""v_and_b32 v{vLane}, 63, v0
    v_lshrrev_b32 v{vt0}, 6, v0
    v_lshlrev_b32 v{vL16}, 4, v{vLane}
    v_readfirstlane_b32 s{sW}, v{vt0}
    s_and_b32 s3, s2, 7
    s_lshr_b32 s{sTmp}, s2, 3
    s_and_b32 s{sQB}, s{sTmp}, 7
    s_lshr_b32 s{sTmp}, s{sTmp}, 3
    s_lshl_b32 s3, s3, 2
    s_add_u32 s{sHead}, s3, s{sTmp}
    s_and_b32 s{sQG}, s{sW}, 3
    s_lshr_b32 s{sKH}, s{sW}, 2
    s_lshl_b32 s{sHB}, s{sHead}, 18
    s_mov_b32 s{sNmax}, 1
    s_waitcnt lgkmcnt(0)""")
    srd(a, 8, 4, KV_OFF, KV_SZ)
    srd(a, 12, 4, QF_OFF, QF_SZ)
    srd(a, 16, 4, A2_OFF, A2_SZ)
    a(f"""s_lshl_b32 s{sTmp}, s{sHead}, 17
    s_lshl_b32 s3, s{sQB}, 14
    s_add_u32 s{sTmp}, s{sTmp}, s3
    s_lshl_b32 s3, s{sQG}, 12
    s_add_u32 s{sTmp}, s{sTmp}, s3""")
    for x in range(2):
        for kk in range(2):
            a(f"buffer_load_dwordx4 {vr(Q[x]+4*kk,4)}, v{vL16}, s[12:15], s{sTmp} offen offset:{x*2048+kk*1024}")
    a(f"""v_lshrrev_b32 v{vt0}, 4, v{vLane}
    v_lshrrev_b32 v{vt1}, 2, v{vLane}
    v_xor_b32 v{vt0}, v{vt0}, v{vt1}
    v_and_b32 v{vt0}, 1, v{vt0}
    v_cmp_eq_u32 vcc, 0, v{vt0}
    v_mov_b32 v{vt1}, 0x3f803f80
    s_nop 0
    v_cndmask_b32 v{SEL}, 0, v{vt1}, vcc
    v_mov_b32 v{SEL+1}, v{SEL}
    v_mov_b32 v{SEL+2}, v{SEL}
    v_mov_b32 v{SEL+3}, v{SEL}""")
    a("AT_restart:")
    a(f"""s_lshl_b32 s{sOffKV}, s{sKH}, 17
    s_add_u32 s{sOffKV}, s{sOffKV}, s{sHB}
    s_lshl_b32 s3, s{sQG}, 12
    s_add_u32 s{sOffKV}, s{sOffKV}, s3
    s_lshl_b32 s{sM0}, s{sKH}, 16
    s_add_u32 s{sM0}, s{sM0}, s3""")
    def dma(soff):
        return [f"buffer_load_dwordx4 v{vL16}, s[8:11], s{soff} offen offset:{q*1024} lds" for q in range(4)]
    for c in range(3):
        a(f"s_add_u32 m0, s{sM0}, {c*16384}")
        a("s_nop 0")
        for l in dma(sOffKV): a(l)
        a(f"s_add_u32 s{sOffKV}, s{sOffKV}, 0x4000")
    a(f"s_mov_b32 s{sSlot}, {3*16384}")
    a(f"v_mov_b32 v{vt0}, {FLAG}")
    a(f"v_mov_b32 v{vt1}, 0")
    a(f"ds_write_b32 v{vt0}, v{vt1}")
    a(f"v_mov_b32 v{vX}, 0xff800000")
    a(f"v_mov_b32 v{vX+1}, 0xff800000")
    a(f"s_mov_b32 s{sC}, 0")
    a(f"s_mov_b32 s{sTmp}, s{sHB}")
    a("AT_maxloop:")
    for kk in range(2):
        a(f"buffer_load_dwordx4 {vr(K[0]+4*kk,4)}, v{vL16}, s[8:11], s{sTmp} offen offset:{kk*1024}")
    a(f"s_add_u32 s{sTmp}, s{sTmp}, 4096")
    a("s_waitcnt vmcnt(0)")
    for x in range(2):
        a(f"v_mfma_f32_32x32x16_bf16 {vr(S[x],16)}, {vr(K[0],4)}, {vr(Q[x],4)}, 0")
        a(f"v_mfma_f32_32x32x16_bf16 {vr(S[x],16)}, {vr(K[0]+4,4)}, {vr(Q[x]+4,4)}, {vr(S[x],16)}")
    a("s_nop 15")
    for x in range(2):
        for k in range(8):
            a(f"v_max3_f32 v{vX+x}, v{S[x]+2*k}, v{S[x]+2*k+1}, v{vX+x}")
    a(f"s_add_u32 s{sC}, s{sC}, 1")
    a(f"s_cmp_lt_u32 s{sC}, s{sNmax}")
    a("s_cbranch_scc1 AT_maxloop")
    for x in range(2):
        a(f"v_mov_b32 v{vt0}, v{vX+x}")
        a("s_nop 1")
        a(f"v_permlane32_swap_b32 v{vt0}, v{vX+x}")
        a("s_nop 1")
        a(f"v_max_f32 v{vt0}, v{vt0}, v{vX+x}")
        a(f"v_sub_f32 v{vt0}, 0, v{vt0}")
        for k in range(16): a(f"v_mov_b32 v{CM[x]+k}, v{vt0}")
    for x in range(2):
        for k in range(16): a(f"v_mov_b32 v{O[x]+k}, 0")
        for k in range(4): a(f"v_mov_b32 v{L[x]+k}, 0")
    for k in range(8):
        a(f"v_mov_b32 v{P[1]+k}, 0")
        a(f"v_mov_b32 v{V[1]+k}, 0")
    a(f"s_lshl_b32 s3, s{sKH}, 16")
    a(f"v_add_u32 v{vRd}, s3, v{vL16}")
    a(f"v_add_u32 v{vRdN}, 0x4000, v{vRd}")
    a("s_waitcnt vmcnt(0) lgkmcnt(0)")
    a("s_barrier")
    for kk in range(2):
        a(f"ds_read_b128 {vr(K[0]+4*kk,4)}, v{vRd} offset:{kk*1024}")
    a("s_waitcnt lgkmcnt(0)")
    def qk(x, kb):
        return [f"v_mfma_f32_32x32x16_bf16 {vr(S[x],16)}, {vr(K[kb],4)}, {vr(Q[x],4)}, {vr(CM[x],16)}",
                f"v_mfma_f32_32x32x16_bf16 {vr(S[x],16)}, {vr(K[kb]+4,4)}, {vr(Q[x]+4,4)}, {vr(S[x],16)}"]
    def pv(x, vb):
        return [f"v_mfma_f32_32x32x16_bf16 {vr(O[x],16)}, {vr(V[vb]+4*u,4)}, {vr(P[x]+4*u,4)}, {vr(O[x],16)}" for u in range(2)]
    def ls(x):
        return [f"v_mfma_f32_16x16x32_bf16 {vr(L[x],4)}, {vr(SEL,4)}, {vr(P[x]+4*u,4)}, {vr(L[x],4)}" for u in range(2)]
    for l in qk(0, 0): a(l)
    a("s_nop 15")
    def phase(x, kb, vb, extra=()):
        y = 1 - x
        q_, p_, l_ = qk(y, kb), pv(y, vb), ls(y)
        e = [f"v_exp_f32 v{S[x]+k}, v{S[x]+k}" for k in range(16)]
        c = [f"v_cvt_pk_bf16_f32 v{P[x]+k}, v{S[x]+2*k}, v{S[x]+2*k+1}" for k in range(8)]
        ex = list(extra)
        def X(): return [ex.pop(0)] if ex else []
        seq = ([q_[0]] + X() + e[0:3] + [c[0]] + [q_[1]] + X() + e[3:6] + [c[1]] + [p_[0]] + X() + e[6:9] + [c[2]] +
               [l_[0]] + X() + [e[9], c[3]] + [p_[1]] + X() + e[10:13] + [c[4]] + [l_[1]] + X() + e[13:16] + [c[5], c[6], c[7]])
        assert not ex
        for l in seq: a(l)
    stamp(a, opt, 1)
    a(f"s_mov_b32 s{sC}, 0")
    a(".p2align 6")
    a("AT_loop:")
    a("s_waitcnt vmcnt(4)")
    a("s_barrier")
    a(f"s_cmp_lt_u32 s{sC}, 5")
    a(f"s_cselect_b32 s{sTmp}, s{sOffKV}, 0x80000000")
    a(f"s_add_u32 m0, s{sM0}, s{sSlot}")
    a(f"s_add_u32 s{sOffKV}, s{sOffKV}, 0x4000")
    a(f"s_add_u32 s{sSlot}, s{sSlot}, 0x4000")
    a(f"s_and_b32 s{sSlot}, s{sSlot}, 0xffff")
    for t in range(4):
        kb, kn = t % 2, (t + 1) % 2
        rd = []
        for kk in range(2):
            if t < 3: rd.append(f"ds_read_b128 {vr(K[kn]+4*kk,4)}, v{vRd} offset:{(t+1)*4096+kk*1024}")
            else: rd.append(f"ds_read_b128 {vr(K[kn]+4*kk,4)}, v{vRdN} offset:{kk*1024}")
        for u in range(2):
            rd.append(f"ds_read_b128 {vr(V[kb]+4*u,4)}, v{vRd} offset:{t*4096+2048+u*1024}")
        phase(0, kb, kn, rd)
        a("s_waitcnt lgkmcnt(0)")
        ex = dma(sTmp) if t == 0 else []
        if t == 3:
            ex = [f"v_mov_b32 v{vRd}, v{vRdN}", f"v_add_u32 v{vRdN}, 0x4000, v{vRdN}",
                  f"v_and_b32 v{vRdN}, 0xffff, v{vRdN}", f"v_lshl_or_b32 v{vRdN}, s{sKH}, 16, v{vRdN}"]
        phase(1, kn, kb, ex)
    a(f"s_add_u32 s{sC}, s{sC}, 1")
    a(f"s_cmp_lt_u32 s{sC}, 8")
    a("s_cbranch_scc1 AT_loop")
    a("s_nop 1")
    for l in pv(1, 1) + ls(1): a(l)
    stamp(a, opt, 2)
    a("s_waitcnt vmcnt(0)")
    a("s_barrier")
    a("s_nop 7")
    a(f"v_max_f32 v{vt0}, v{L[0]}, v{L[1]}")
    a(f"v_add_f32 v{vt1}, v{L[0]}, v{L[1]}")
    a(f"v_mov_b32 v{vt2}, {f32(2.0**29)}")
    a(f"v_cmp_nle_f32 vcc, v{vt1}, v{vt2}")
    a(f"s_cmp_eq_u64 vcc, 0")
    a("s_cbranch_scc1 AT_ok")
    a(f"v_mov_b32 v{vt0}, {FLAG}")
    a(f"v_mov_b32 v{vt1}, 1")
    a(f"ds_write_b32 v{vt0}, v{vt1}")
    a("AT_ok:")
    a(f"s_lshl_b32 s3, s{sW}, 13")
    a(f"v_add_u32 v{vt0}, s3, v{vL16}")
    a(f"s_xor_b32 s3, s{sW}, 4")
    a(f"s_lshl_b32 s3, s3, 13")
    a(f"v_add_u32 v{vt1}, s3, v{vL16}")
    a(f"s_cmp_eq_u32 s{sKH}, 0")
    a("s_cbranch_scc1 AT_x0")
    for j in range(4): a(f"ds_write_b128 v{vt0}, {vr(O[0]+4*j,4)} offset:{j*1024}")
    a(f"ds_write_b128 v{vt0}, {vr(L[0],4)} offset:4096")
    a("s_waitcnt lgkmcnt(0)")
    for k in range(16): a(f"v_mov_b32 v{O[0]+k}, v{O[1]+k}")
    a(f"v_mov_b32 v{L[0]}, v{L[1]}")
    a("s_branch AT_x1")
    a("AT_x0:")
    for j in range(4): a(f"ds_write_b128 v{vt0}, {vr(O[1]+4*j,4)} offset:{j*1024}")
    a(f"ds_write_b128 v{vt0}, {vr(L[1],4)} offset:4096")
    a("s_waitcnt lgkmcnt(0)")
    a("AT_x1:")
    a("s_barrier")
    for j in range(4): a(f"ds_read_b128 {vr(O[1]+4*j,4)}, v{vt1} offset:{j*1024}")
    a(f"ds_read_b128 {vr(L[1],4)}, v{vt1} offset:4096")
    a(f"v_mov_b32 v{vt0}, {FLAG}")
    a(f"ds_read_b32 v{vt2}, v{vt0}")
    a("s_waitcnt lgkmcnt(0)")
    a(f"v_readfirstlane_b32 s3, v{vt2}")
    a(f"s_cmp_eq_u32 s{sNmax}, 1")
    a(f"s_cselect_b32 s3, s3, 0")
    a(f"s_cmp_eq_u32 s3, 0")
    a("s_cbranch_scc1 AT_fin")
    a(f"s_mov_b32 s{sNmax}, 64")
    a("s_barrier")
    a("s_branch AT_restart")
    a("AT_fin:")
    a(f"v_add_f32 v{L[0]}, v{L[0]}, v{L[1]}")
    a(f"v_rcp_f32 v{L[0]}, v{L[0]}")
    for k in range(16): a(f"v_add_f32 v{O[0]+k}, v{O[0]+k}, v{O[1]+k}")
    for k in range(16): a(f"v_mul_f32 v{O[0]+k}, v{O[0]+k}, v{L[0]}")
    o = O[0]
    for ch in range(2):
        for half in range(2):
            j = ch + 2 * half
            a(f"v_cvt_pk_bf16_f32 v{S[0]+4*ch+2*half}, v{o+4*j}, v{o+4*j+1}")
            a(f"v_cvt_pk_bf16_f32 v{S[0]+4*ch+2*half+1}, v{o+4*j+2}, v{o+4*j+3}")
    a(f"""v_bfe_u32 v{vt0}, v{vLane}, 4, 1
    v_lshlrev_b32 v{vt0}, 10, v{vt0}
    v_lshrrev_b32 v{vt1}, 5, v{vLane}
    v_lshl_add_u32 v{vt0}, v{vt1}, 8, v{vt0}
    v_and_b32 v{vt1}, 15, v{vLane}
    v_lshl_add_u32 v{vSt}, v{vt1}, 4, v{vt0}
    s_lshl_b32 s{sTmp}, s{sHead}, 17
    s_lshl_b32 s3, s{sQB}, 14
    s_add_u32 s{sTmp}, s{sTmp}, s3
    s_lshl_b32 s3, s{sQG}, 12
    s_add_u32 s{sTmp}, s{sTmp}, s3
    s_lshl_b32 s3, s{sKH}, 11
    s_add_u32 s{sTmp}, s{sTmp}, s3""")
    for ch in range(2):
        a(f"buffer_store_dwordx4 {vr(S[0]+4*ch,4)}, v{vSt}, s[16:19], s{sTmp} offen offset:{512*ch}")
    stamp(a, opt, 3)
    if opt.get("stamp"): a("s_waitcnt vmcnt(0)")
    stamp_out(a, opt, 2, 5, sW)
    a("AT_end:")
    a("s_endpgm")
    return kernel_desc("attn_kernel", 184, 184, 102 if opt.get("stamp") else 48)

def gen_gemm2(a, opt):
    kernel_begin(a, "gemm2_kernel")
    a("s_cmp_ge_u32 s2, 256")
    a("s_cbranch_scc1 G2_end")
    stamp(a, opt, 0)
    a(f"s_load_dwordx2 s[4:5], s[0:1], {KA_WO}")
    a(f"s_load_dwordx2 s[6:7], s[0:1], {KA_W2}")
    a(f"s_load_dwordx2 s[24:25], s[0:1], {KA_WS}")
    a(f"s_load_dwordx2 s[40:41], s[0:1], {KA_X}")
    a(f"s_load_dwordx2 s[42:43], s[0:1], {KA_OUT}")
    D = 4
    NSB = 8
    T = 128
    vLane, vG, vT = T, T + 1, T + 2
    vA0, vA1 = T + 3, T + 4
    vBdma = T + 5
    vBrd = T + 9
    vt0, vt1, vt2, vt3 = T + 13, T + 14, T + 15, T + 16
    FB = T + 20
    sW, sMT, sNT, sOffA, sOffB, sM0, sIt, sTmp = 26, 27, 28, 29, 30, 31, 32, 33
    a(f"""v_and_b32 v{vLane}, 63, v0
    v_lshrrev_b32 v{vt0}, 6, v0
    v_lshrrev_b32 v{vG}, 4, v{vLane}
    v_readfirstlane_b32 s{sW}, v{vt0}
    v_and_b32 v{vT}, 15, v{vLane}
    s_and_b32 s3, s2, 7
    s_lshr_b32 s{sTmp}, s2, 3
    s_lshr_b32 s{sMT}, s3, 1
    s_lshl_b32 s{sMT}, s{sMT}, 2
    s_and_b32 s{sNT}, s{sTmp}, 3
    s_add_u32 s{sMT}, s{sMT}, s{sNT}
    s_and_b32 s{sNT}, s3, 1
    s_lshl_b32 s{sNT}, s{sNT}, 3
    s_lshr_b32 s{sTmp}, s{sTmp}, 2
    s_add_u32 s{sNT}, s{sNT}, s{sTmp}
    {"s_mov_b32 s27, 0" if opt.get("g2_same") in ("1","a") else ""}
    {"s_mov_b32 s28, 0" if opt.get("g2_same") in ("1","b") else ""}
    v_lshlrev_b32 v{vA0}, 4, v{vLane}
    v_add_u32 v{vA1}, 4096, v{vA0}
    s_lshl_b32 s{sOffA}, s{sMT}, 13
    s_lshl_b32 s3, s{sW}, 17
    s_add_u32 s{sOffA}, s{sOffA}, s3
    s_lshl_b32 s{sOffB}, s{sW}, 16
    s_mul_i32 s{sM0}, s{sW}, {NSB*4096}""")
    a(f"""v_lshrrev_b32 v{vt0}, 3, v{vLane}
    v_and_b32 v{vt1}, 7, v{vLane}
    v_and_b32 v{vt2}, 6, v{vt0}
    v_xor_b32 v{vt1}, v{vt1}, v{vt2}
    v_lshlrev_b32 v{vt1}, 4, v{vt1}
    v_lshl_add_u32 v{vt1}, v{vt0}, 11, v{vt1}
    s_lshl_b32 s3, s{sNT}, 7
    v_add_u32 v{vBdma}, s3, v{vt1}""")
    for q in range(1, 4):
        a(f"v_add_u32 v{vBdma+q}, {q*(16384-1024)}, v{vBdma}")
    a(f"""v_lshrrev_b32 v{vt0}, 2, v{vLane}
    v_bfe_u32 v{vt1}, v{vt0}, 1, 2
    v_lshlrev_b32 v{vt0}, 7, v{vt0}
    v_and_b32 v{vt2}, 3, v{vLane}
    v_lshl_add_u32 v{vt0}, v{vt2}, 3, v{vt0}
    v_add_u32 v{vt0}, s{sM0}, v{vt0}""")
    for b in range(4):
        a(f"v_xor_b32 v{vt2}, {b}, v{vt1}")
        a(f"v_lshl_add_u32 v{vBrd+b}, v{vt2}, 5, v{vt0}")
    a("s_waitcnt lgkmcnt(0)")
    srd(a, 8, 24, A2_OFF, A2_SZ)
    srd(a, 12, 4, 0, 1024 * 2048)
    srd(a, 16, 6, 0, 3584 * 2048)
    srd(a, 20, 40, 0, 4 * MB)
    srd(a, 44, 42, 0, 4 * MB)
    def fA(st, mi): return 32 * st + 4 * mi
    def fB(st, ni): return FB + 16 * st + 4 * ni
    def acc(mi, ni): return (mi * 4 + ni) * 4
    def dmaB(j):
        s_ = 12 if j < 8 else 16
        L = [[f"s_add_u32 m0, s{sM0}, {(j%NSB)*4096}", "s_nop 0",
              f"buffer_load_dwordx4 v{vBdma}, s[{s_}:{s_+3}], s{sOffB} offen lds"]]
        for q in range(1, 4):
            L.append([f"buffer_load_dwordx4 v{vBdma+q}, s[{s_}:{s_+3}], s{sOffB} offen offset:{1024*q} lds"])
        if j == 7: L[-1].append(f"s_lshl_b32 s{sOffB}, s{sW}, 16")
        else: L[-1].append(f"s_add_u32 s{sOffB}, s{sOffB}, 0x40000")
        return L
    def ldA(st, mi):
        return f"buffer_load_dwordx4 {ar(fA(st,mi),4)}, v{vA0 if mi<4 else vA1}, s[8:11], s{sOffA} offen offset:{(mi&3)*1024}"
    incA = f"s_add_u32 s{sOffA}, s{sOffA}, 0x80000"
    def rdB(j):
        return [f"ds_read_b64_tr_b16 {vr(fB(j%2,ni)+2*i,2)}, v{vBrd+ni} offset:{(j%NSB)*4096+i*2048}" for ni in range(4) for i in range(2)]
    for g in dmaB(0):
        for l in g: a(l)
    for j in range(D):
        for g in dmaB(j + 1):
            for l in g: a(l)
        for mi in range(8): a(ldA(j % D, mi))
        a(incA)
    for r in range(128): a(f"v_mov_b32 v{r}, 0")
    a(f"s_waitcnt vmcnt({12*D})")
    for l in rdB(0): a(l)
    NST = 36
    def step(i):
        rem_groups = min(D - 1, NST - 1 - i)
        cnt = 0
        for j in range(i + 1, min(i + D, NST)):
            cnt += 8 + (4 if j + 1 < NST else 0)
        a(f"s_waitcnt vmcnt({cnt}) lgkmcnt(0)")
        M = []
        nj = i + D
        Bd = dmaB(nj + 1) if nj + 1 < NST else []
        R = rdB(i + 1) if i + 1 < NST else []
        for mi in range(8):
            for ni in range(4):
                d = vr(acc(mi, ni), 4)
                if opt.get("g2_nomfma"): a("s_nop 0")
                else: a(f"v_mfma_f32_16x16x32_bf16 {d}, {vr(fB(i%2,ni),4)}, {ar(fA(i%D,mi),4)}, {d}")
                if mi == 0 and Bd:
                    for l in Bd[ni]: a(l)
                elif mi >= 1 and ni % 2 == 1 and R:
                    a(R.pop(0))
                if mi >= 1 and ni == 0 and nj < NST:
                    a(ldA(nj % D, mi - 1))
        if nj < NST:
            a(ldA(nj % D, 7))
            a(incA)
    stamp(a, opt, 1)
    for i in range(8): step(i)
    a(f"s_mov_b32 s{sIt}, 2")
    a(".p2align 6")
    a("G2_loop:")
    for i in range(8, 16): step(i)
    a(f"s_sub_u32 s{sIt}, s{sIt}, 1")
    a(f"s_cmp_lg_u32 s{sIt}, 0")
    a("s_cbranch_scc1 G2_loop")
    for i in range(24, 36): step(i)
    stamp(a, opt, 2)
    a("s_barrier")
    a(f"""s_lshl_b32 s3, s{sW}, 6
    v_add_u32 v{vt0}, s3, v{vLane}
    v_lshrrev_b32 v{vt1}, 3, v{vt0}
    v_and_b32 v{vt2}, 7, v{vt0}
    v_lshlrev_b32 v{vA0}, 11, v{vt1}
    v_lshl_add_u32 v{vA0}, v{vt2}, 4, v{vA0}
    s_lshl_b32 s{sTmp}, s{sMT}, 18
    s_lshl_b32 s3, s{sNT}, 7
    s_add_u32 s{sTmp}, s{sTmp}, s3""")
    XR = FB
    for it in range(4):
        a(f"s_add_u32 s3, s{sTmp}, {it*32*2048}")
        a(f"buffer_load_dwordx4 {vr(XR+4*it,4)}, v{vA0}, s[20:23], s3 offen")
    a(f"""v_and_b32 v{vt3}, 15, v{vt1}
    v_lshlrev_b32 v{vt2}, 1, v{vt2}
    v_xor_b32 v{vt2}, v{vt2}, v{vt3}
    v_lshlrev_b32 v{vt1}, 8, v{vt1}
    v_lshl_add_u32 v{vBrd}, v{vt2}, 4, v{vt1}
    v_xor_b32 v{vBrd+1}, 16, v{vBrd}
    v_add_u32 v{vBrd+2}, 0x10000, v{vBrd}
    v_add_u32 v{vBrd+3}, 0x10000, v{vBrd+1}""")
    a(f"s_lshl_b32 s3, s{sW}, 15")
    a(f"v_lshlrev_b32 v{vt0}, 8, v{vT}")
    a(f"v_add_u32 v{vt0}, s3, v{vt0}")
    for ni in range(4):
        a(f"v_or_b32 v{vt1}, {4*ni}, v{vG}")
        a(f"v_xor_b32 v{vt1}, v{vt1}, v{vT}")
        a(f"v_lshl_add_u32 v{vBdma+ni}, v{vt1}, 4, v{vt0}")
    for mi in range(8):
        for ni in range(4):
            a(f"ds_write_b128 v{vBdma+ni}, {vr(acc(mi,ni),4)} offset:{mi*4096}")
    a("s_waitcnt lgkmcnt(0)")
    a("s_barrier")
    for it in range(4):
        for w in range(4):
            for hf in range(2):
                a(f"ds_read_b128 {vr(32*it+8*w+4*hf,4)}, v{vBrd+hf+2*(w>>1)} offset:{(w&1)*32768+it*8192}")
    a("s_mov_b32 s3, 0xffff0000")
    a("s_waitcnt vmcnt(0)")
    for it in range(4):
        a(f"s_waitcnt lgkmcnt({min(15, 8*(3-it))})" if it < 2 else f"s_waitcnt lgkmcnt({8*(3-it)})")
        if it < 2: a(f"s_waitcnt lgkmcnt(8)") if False else None
        b = 32 * it
        for k in range(8):
            a(f"v_add_f32 v{b+k}, v{b+k}, v{b+8+k}")
            a(f"v_add_f32 v{b+16+k}, v{b+16+k}, v{b+24+k}")
        for k in range(4):
            a(f"v_lshlrev_b32 v{b+8+2*k}, 16, v{XR+4*it+k}")
            a(f"v_and_b32 v{b+9+2*k}, s3, v{XR+4*it+k}")
        for k in range(8):
            a(f"v_add_f32 v{b+k}, v{b+k}, v{b+16+k}")
        for k in range(8):
            a(f"v_add_f32 v{b+k}, v{b+k}, v{b+8+k}")
        for k in range(4):
            a(f"v_cvt_pk_bf16_f32 v{b+k}, v{b+2*k}, v{b+2*k+1}")
        a(f"s_add_u32 s{sIt}, s{sTmp}, {it*32*2048}")
        a(f"buffer_store_dwordx4 {vr(b,4)}, v{vA0}, s[44:47], s{sIt} offen")
    stamp(a, opt, 3)
    if opt.get("stamp"): a("s_waitcnt vmcnt(0)")
    stamp_out(a, opt, 3, 5, sW)
    a("G2_end:")
    a("s_endpgm")
    return kernel_desc("gemm2_kernel", 184 + 128, 184, 102 if opt.get("stamp") else 56)

HEADER = open("cdna_kernels/" + NAME + ".s.ref").read().split("; Override launch")[0]

def build(opt=None):
    opt = opt or {}
    a = Asm()
    launches = [("ln_kernel", 256, 256, 1024), ("gemm1_kernel", 256, 256, 131072),
                ("attn_kernel", 256, 512, 131072 + 64), ("gemm2_kernel", 256, 256, 131072)]
    head = HEADER + "".join(f"; @launch kernel={k} grid=({g},1,1) block=({b},1,1) lds={l}\n" for k, g, b, l in launches)
    a('.amdgcn_target "amdgcn-amd-amdhsa--gfx950"')
    a(".text")
    descs = [gen_ln(a, opt), gen_gemm1(a, opt), gen_attn(a, opt), gen_gemm2(a, opt)]
    return head + a.text() + '.section .rodata,"a"\n' + "".join(descs)

if __name__ == "__main__":
    out = sys.argv[1] if len(sys.argv) > 1 else "cdna_kernels/" + NAME + ".s"
    opt = dict(kv.split("=") for kv in sys.argv[2:])
    open(out, "w").write(build(opt))
```

```python
import sys, math, struct
from asmlib import *

NAME = "parallel_sum__softmax_full_mha__dense_activation_relu__prompt"
KNAME = NAME + "_kernel"
MB = 1 << 20
QF_OFF, KV_OFF, A2_OFF, PART_OFF = 0, 4 * MB, 12 * MB, 32 * MB
STATS_OFF = 40 * MB
CSP_OFF = 40 * MB + 65536
FL_QKV = 41 * MB
FL_H = FL_QKV + 16 * 128
FL_O = FL_H + 8 * 128
FL_P = FL_O + 8 * 128
STAMP_OFF = 42 * MB
WS_USED = 44 * MB
QSCALE = (32 ** -0.5) * math.log2(math.e)
OOB = 0x80000000
def f32(x): return hex(struct.unpack("<I", struct.pack("<f", x))[0])

pX, pWQKV, pWO, pW1, pW2, pOUT, pDBG, pWS = 16, 18, 20, 24, 26, 28, 30, 32
WS, XS, WW, OS, DS, W2S = "s[36:39]", "s[40:43]", "s[44:47]", "s[48:51]", "s[52:55]", "s[56:59]"
sW, sX, sJ, sMT, sCQ, sCT, sWR, sWC = 4, 5, 6, 7, 8, 9, 10, 11
sSpin, sStamp = 12, 13
vLane, vL16, vP0, vP1 = 255, 254, 252, 253
SC1 = " sc1"

def stamp(a, opt, i):
    if not opt.get("stamp"): return
    a("s_memtime s[96:97]")
    a("s_memrealtime s[98:99]")
    a("s_waitcnt lgkmcnt(0)")
    a(f"v_mov_b32 v{vP0}, s96")
    a(f"v_mov_b32 v{vP1}, s98")
    a(f"buffer_store_dwordx2 v[{vP0}:{vP1}], off, {WS}, s{sStamp} offset:{8*i}")
    a("s_nop 1")

def poll(a, soff, nwords, name):
    mask = (1 << nwords) - 1
    a(f"v_lshrrev_b32 v{vP1}, 2, v{vL16}")
    a(f"{name}:")
    a(f"buffer_load_dword v{vP0}, v{vP1}, {WS}, s{soff} offen sc1")
    a("s_waitcnt vmcnt(0)")
    a(f"v_cmp_eq_u32 vcc, 1, v{vP0}")
    a(f"s_and_b32 s3, vcc_lo, {hex(mask)}")
    a(f"s_cmp_eq_u32 s3, {hex(mask)}")
    a(f"s_cbranch_scc1 {name}_ok")
    a("s_sleep 2")
    a(f"s_sub_u32 s{sSpin}, s{sSpin}, 1")
    a(f"s_cmp_gt_i32 s{sSpin}, 0")
    a(f"s_cbranch_scc1 {name}")
    a(f"{name}_ok:")

def flag_store(a, soff, val):
    a(f"v_cmp_eq_u32 vcc, 0, v{vLane}")
    a(f"v_mov_b32 v{vP1}, {hex(OOB)}")
    a(f"v_mov_b32 v{vP0}, {val}")
    a(f"v_cndmask_b32 v{vP1}, v{vP1}, 0, vcc")
    a(f"buffer_store_dword v{vP0}, v{vP1}, {WS}, s{soff} offen sc1")

def publish(a, soff, name):
    a("s_waitcnt vmcnt(0)")
    a("s_barrier")
    a(f"s_cmp_lg_u32 s{sW}, 0")
    a(f"s_cbranch_scc1 {name}")
    flag_store(a, soff, 1)
    a(f"{name}:")

sFlG1, sFlO, sFlP = 14, 15, 34
sHead, sQB, sMT2, sNT, sTile = 35, 60, 61, 62, 63

def gen_entry(a, opt):
    kernel_begin(a, KNAME)
    a("s_cmp_ge_u32 s2, 256")
    a("s_cbranch_scc1 K_end")
    a("s_load_dwordx16 s[16:31], s[0:1], 0")
    a("s_load_dwordx2 s[32:33], s[0:1], 64")
    a(f"""v_and_b32 v{vLane}, 63, v0
    v_lshrrev_b32 v1, 6, v0
    v_lshlrev_b32 v{vL16}, 4, v{vLane}
    v_readfirstlane_b32 s{sW}, v1
    s_and_b32 s{sX}, s2, 7
    s_lshr_b32 s{sJ}, s2, 3
    s_and_b32 s{sMT}, s{sJ}, 7
    s_lshr_b32 s{sCQ}, s{sJ}, 3
    s_and_b32 s{sCT}, s{sCQ}, 1
    s_lshl_b32 s3, s{sX}, 1
    s_add_u32 s{sCT}, s{sCT}, s3
    s_lshr_b32 s{sWR}, s{sW}, 1
    s_and_b32 s{sWC}, s{sW}, 1
    s_mov_b32 s{sSpin}, 0x40000
    s_lshl_b32 s{sStamp}, s2, 2
    s_add_u32 s{sStamp}, s{sStamp}, s{sW}
    s_lshl_b32 s{sStamp}, s{sStamp}, 7
    s_add_u32 s{sStamp}, s{sStamp}, {hex(STAMP_OFF)}
    s_lshl_b32 s{sHead}, s{sX}, 2
    s_add_u32 s{sHead}, s{sHead}, s{sCQ}
    s_mov_b32 s{sQB}, s{sMT}
    s_lshr_b32 s{sMT2}, s{sX}, 1
    s_lshl_b32 s{sMT2}, s{sMT2}, 2
    s_and_b32 s3, s{sJ}, 3
    s_add_u32 s{sMT2}, s{sMT2}, s3
    s_and_b32 s{sNT}, s{sX}, 1
    s_lshl_b32 s{sNT}, s{sNT}, 2
    s_bfe_u32 s3, s{sJ}, 0x20002
    s_add_u32 s{sNT}, s{sNT}, s3
    s_lshl_b32 s{sTile}, s{sMT2}, 3
    s_add_u32 s{sTile}, s{sTile}, s{sNT}
    s_lshl_b32 s{sFlP}, s{sTile}, 7
    s_add_u32 s{sFlP}, s{sFlP}, {hex(FL_P)}
    s_lshl_b32 s{sFlO}, s{sQB}, 7
    s_lshl_b32 s3, s{sHead}, 2
    s_add_u32 s{sFlO}, s{sFlO}, s3
    s_add_u32 s{sFlO}, s{sFlO}, {hex(FL_O)}
    s_waitcnt lgkmcnt(0)""")
    srd(a, 36, pWS, 0, WS_USED)
    srd(a, 40, pX, 0, 4 * MB)
    srd(a, 48, pOUT, 0, 4 * MB)
    srd(a, 52, pDBG, 0, 256)
    srd(a, 56, pW2, 0, 3584 * 2048)
    stamp(a, opt, 0)

def gen_g1(a, opt):
    vAb, vArd, vBrd, vAdma, vBdma = 224, 226, 228, 231, 235
    vt0, vt1, vt2, vt3 = 239, 240, 241, 242
    vG, vT = 250, 251
    vCSo, vPoll = 243, 244
    sRowA, sColA, sOffB, sM0A, sM0B, sIt = 64, 65, 66, 67, 68, 69
    sSlW, sSlR, sCSit, sArr, sT0, sT1, sT2, sT3, sT4 = 70, 71, 72, 73, 74, 75, 76, 77, 78
    BB = 98304
    ONES, CSA = 124, 128
    R = int(opt.get("rot", 4))
    a(f"""s_lshl_b32 s{sT0}, s{sMT}, 8
    s_lshl_b32 s3, s{sHead}, 3
    s_add_u32 s{sT0}, s{sT0}, s3
    s_lshl_b32 s3, s{sW}, 1
    s_add_u32 s{sT0}, s{sT0}, s3
    s_lshl_b32 s{sT1}, s{sT0}, 11
    v_lshrrev_b32 v1, 5, v{vLane}
    v_and_b32 v2, 31, v{vLane}
    v_lshlrev_b32 v3, 4, v2
    v_lshl_add_u32 v3, v1, 11, v3""")
    for i in range(4):
        a(f"buffer_load_dwordx4 v[{8+4*i}:{11+4*i}], v3, {XS}, s{sT1} offen offset:{512*i}")
    a(f"""v_lshrrev_b32 v{vG}, 4, v{vLane}
    v_and_b32 v{vT}, 15, v{vLane}
    v_lshrrev_b32 v{vt0}, 3, v{vLane}
    v_and_b32 v{vt1}, 7, v{vLane}
    v_xor_b32 v{vt1}, v{vt1}, v{vG}
    v_lshlrev_b32 v{vt1}, 4, v{vt1}
    v_lshl_add_u32 v{vAdma}, v{vt0}, 11, v{vt1}
    v_xor_b32 v{vAdma+1}, 64, v{vAdma}
    v_add_u32 v{vAdma+2}, {2*(16384-1024)}, v{vAdma}
    v_add_u32 v{vAdma+1}, {16384-1024}, v{vAdma+1}
    v_add_u32 v{vAdma+3}, {2*(16384-1024)}, v{vAdma+1}
    s_lshl_b32 s{sRowA}, s{sMT}, 19
    s_lshl_b32 s3, s{sW}, 17
    s_add_u32 s{sRowA}, s{sRowA}, s3
    s_and_b32 s{sT2}, s{sMT}, {R-1}
    s_mul_i32 s{sT2}, s{sT2}, {32//R}
    s_lshl_b32 s{sColA}, s{sT2}, 6
    s_lshl_b32 s{sM0A}, s{sW}, 13
    s_mov_b32 s{sSlW}, 0
    s_mov_b32 s{sSlR}, 0
    s_lshr_b32 s{sCSit}, s{sMT}, {int(math.log2(R))}
    s_cmp_eq_u32 s{sW}, 0
    s_cselect_b32 s{sArr}, {max(3, 8//R+1)}, 99""")
    def dmaA(half):
        L = [[f"s_add_u32 s{sT3}, s{sM0A}, s{sSlW}",
              f"s_add_u32 s{sT4}, s{sRowA}, s{sColA}",
              f"s_add_u32 m0, s{sT3}, {half*4096}"] +
             ([f"s_add_u32 s{sT4}, s{sT4}, 0x10000"] if half else ["s_nop 0"]) +
             [f"buffer_load_dwordx4 v{vAdma}, {XS}, s{sT4} offen lds"]]
        for q in range(1, 4):
            L.append([f"buffer_load_dwordx4 v{vAdma+q}, {XS}, s{sT4} offen offset:{1024*q} lds"])
        if half:
            L[-1] += [f"s_add_u32 s{sColA}, s{sColA}, 128", f"s_and_b32 s{sColA}, s{sColA}, 2047"]
            L[-2] += [f"s_add_u32 s{sSlW}, s{sSlW}, 0x8000", f"s_cmp_eq_u32 s{sSlW}, 0x18000", f"s_cselect_b32 s{sSlW}, 0, s{sSlW}"]
        return L
    def emit(L):
        for g in L:
            for l in g: a(l)
    emit(dmaA(0)); emit(dmaA(1))
    a(f"s_cmp_ge_u32 s{sCQ}, 2")
    a("s_cbranch_scc1 G1_ffn")

    for path in ("qkv", "ffn"):
        ffn = path == "ffn"
        NB = 7 if ffn else 6
        CPR = 28 if ffn else 24
        PITCH = CPR * 16
        PPW = 4 if ffn else 3
        WP = 7168 if ffn else 6144
        LPS = 4 + PPW
        MAGIC = -(-65536 // CPR)
        assert all((p * MAGIC) >> 16 == p // CPR for p in range(1024))
        if ffn:
            a("G1_ffn:")
            srd(a, 44, pW1, 0, 1024 * WP)
        else:
            srd(a, 44, pWQKV, 0, 1024 * WP)
        a(f"s_mul_i32 s{sM0B}, s{sW}, {PPW*1024}")
        a(f"s_add_u32 s{sM0B}, s{sM0B}, {BB}")
        a(f"s_mul_i32 s{sOffB}, s{sT2}, {32*WP}")
        a(f"s_mul_i32 s{sT1}, s{sCT}, {448 if ffn else 128}")
        a(f"s_mul_i32 s3, s{sW}, {PPW*64}")
        a(f"s_mov_b32 s{sT3}, {MAGIC}")
        a(f"s_mov_b32 s{sT4}, {WP}")
        for q in range(PPW):
            d = vBdma + q
            a(f"v_add_u32 v{vt0}, s3, v{vLane}")
            if q: a(f"v_add_u32 v{vt0}, {64*q}, v{vt0}")
            a(f"v_mul_lo_u32 v{vt1}, v{vt0}, s{sT3}")
            a(f"v_lshrrev_b32 v{vt1}, 16, v{vt1}")
            a(f"v_mul_u32_u24 v{vt2}, {CPR}, v{vt1}")
            a(f"v_sub_u32 v{vt0}, v{vt0}, v{vt2}")
            if ffn:
                a(f"v_bfe_u32 v{vt2}, v{vt1}, 3, 1")
                a(f"v_lshlrev_b32 v{vt2}, 1, v{vt2}")
                a(f"v_xor_b32 v{vt0}, v{vt0}, v{vt2}")
                a(f"v_lshlrev_b32 v{vt0}, 4, v{vt0}")
            else:
                a(f"v_and_b32 v{vt2}, 2, v{vt1}")
                a(f"v_bfe_u32 v{vt3}, v{vt1}, 3, 1")
                a(f"v_lshl_or_b32 v{vt2}, v{vt3}, 2, v{vt2}")
                a(f"v_xor_b32 v{vt0}, v{vt0}, v{vt2}")
                a(f"v_lshrrev_b32 v{vt2}, 3, v{vt0}")
                a(f"v_and_b32 v{vt0}, 7, v{vt0}")
                a(f"v_lshlrev_b32 v{vt0}, 4, v{vt0}")
                a(f"v_lshl_add_u32 v{vt0}, v{vt2}, 11, v{vt0}")
            a(f"v_mul_lo_u32 v{vt2}, v{vt1}, s{sT4}")
            a(f"v_add3_u32 v{d}, v{vt2}, v{vt0}, s{sT1}")
            if q: a(f"v_subrev_u32 v{d}, {1024*q}, v{d}")
            if ffn and q >= 2:
                a(f"v_cmp_lt_u32 vcc, 31, v{vt1}")
                a(f"v_mov_b32 v{vt2}, {hex(OOB)}")
                a("s_nop 0")
                a(f"v_cndmask_b32 v{d}, v{d}, v{vt2}, vcc")
        def dmaB(slot):
            L = [[f"s_add_u32 m0, s{sM0B}, {slot*16384}", "s_nop 0",
                  f"buffer_load_dwordx4 v{vBdma}, {WW}, s{sOffB} offen lds"]]
            for q in range(1, PPW):
                L.append([f"buffer_load_dwordx4 v{vBdma+q}, {WW}, s{sOffB} offen offset:{1024*q} lds"])
            L[-1].append(f"s_add_u32 s{sOffB}, s{sOffB}, {32*WP}")
            if slot == 3:
                L[-1] += [f"s_cmp_eq_u32 s{sOffB}, {1024*WP}", f"s_cselect_b32 s{sOffB}, 0, s{sOffB}"]
            return L
        emit(dmaB(0))
        emit(dmaA(0)); emit(dmaB(1))
        emit(dmaA(1)); emit(dmaB(2))
        emit(dmaA(0)); emit(dmaB(3))
        NISS = 8 + PPW + 3 * LPS
        a(f"v_lshrrev_b32 v{vt0}, 1, v{vT}")
        a(f"v_xor_b32 v{vt0}, v{vt0}, v{vG}")
        a(f"v_lshlrev_b32 v{vt0}, 4, v{vt0}")
        a(f"v_lshl_add_u32 v{vt0}, v{vT}, 7, v{vt0}")
        a(f"s_lshl_b32 s3, s{sWR}, 14")
        a(f"v_add_u32 v{vAb}, s3, v{vt0}")
        a(f"v_xor_b32 v{vAb+1}, 64, v{vAb}")
        a(f"v_mov_b32 v{vArd}, v{vAb}")
        a(f"v_mov_b32 v{vArd+1}, v{vAb+1}")
        a(f"v_lshrrev_b32 v{vt0}, 2, v{vT}")
        a(f"v_lshl_add_u32 v{vt1}, v{vG}, 3, v{vt0}")
        a(f"v_mul_u32_u24 v{vt1}, {PITCH}, v{vt1}")
        a(f"v_and_b32 v{vt2}, 3, v{vLane}")
        a(f"v_lshl_add_u32 v{vt1}, v{vt2}, 3, v{vt1}")
        a(f"v_add_u32 v{vt1}, {BB}, v{vt1}")
        a(f"v_and_b32 v{vt2}, 1, v{vG}")
        if ffn:
            a(f"v_lshlrev_b32 v{vt3}, 5, v{vt2}")
            a(f"s_lshl_b32 s3, s{sWC}, 8")
            a(f"v_add3_u32 v{vBrd}, v{vt1}, v{vt3}, s3")
            a(f"v_sub_u32 v{vBrd+1}, v{vt1}, v{vt3}")
            a(f"v_add_u32 v{vBrd+1}, s3, v{vBrd+1}")
            a(f"s_add_u32 s3, s{sWC}, 6")
            a(f"v_xor_b32 v{vt3}, s3, v{vt2}")
            a(f"v_lshl_add_u32 v{vBrd+2}, v{vt3}, 5, v{vt1}")
        else:
            a(f"v_lshrrev_b32 v{vt0}, 1, v{vt0}")
            a(f"v_lshl_or_b32 v{vt0}, v{vt2}, 1, v{vt0}")
            a(f"s_lshl_b32 s3, s{sWC}, 1")
            a(f"v_xor_b32 v{vt3}, s3, v{vt0}")
            a(f"v_lshl_add_u32 v{vBrd}, v{vt3}, 5, v{vt1}")
            a(f"v_xor_b32 v{vt3}, 1, v{vt3}")
            a(f"v_lshl_add_u32 v{vBrd+1}, v{vt3}, 5, v{vt1}")
        if ffn:
            a(f"s_lshl_b32 s{sFlG1}, s{sMT}, 7\ns_lshl_b32 s3, s{sCT}, 2\ns_add_u32 s{sFlG1}, s{sFlG1}, s3\ns_add_u32 s{sFlG1}, s{sFlG1}, {hex(FL_H)}")
        else:
            a(f"s_lshl_b32 s{sFlG1}, s{sCT}, 7\ns_lshl_b32 s3, s{sMT}, 2\ns_add_u32 s{sFlG1}, s{sFlG1}, s3\ns_add_u32 s{sFlG1}, s{sFlG1}, {hex(FL_QKV)}")
        a(f"v_lshlrev_b32 v{vCSo}, 4, v{vG}")
        a(f"s_lshl_b32 s3, s{sWC}, {9 if ffn else 7}")
        a(f"v_add_u32 v{vCSo}, s3, v{vCSo}")
        a(f"v_or_b32 v{vt0}, s{sWR}, v{vT}")
        a(f"v_cmp_eq_u32 vcc, 0, v{vt0}")
        a(f"v_mov_b32 v{vt1}, {hex(OOB)}")
        a(f"v_mov_b32 v{vt2}, 0x3f803f80")
        a(f"v_cndmask_b32 v{vCSo}, v{vt1}, v{vCSo}, vcc")
        for k in range(4): a(f"v_accvgpr_write_b32 a{ONES+k}, v{vt2}")
        a("s_mov_b32 s3, 0xffff0000")
        a(f"s_waitcnt vmcnt({NISS})")
        for j in range(16):
            a(f"v_lshlrev_b32 v{24+2*j}, 16, v{8+j}")
            a(f"v_and_b32 v{25+2*j}, s3, v{8+j}")
        for p in range(4): a(f"v_add_f32 v{56+p}, v{24+8*p}, v{25+8*p}")
        for k in range(2, 8):
            for p in range(4): a(f"v_add_f32 v{56+p}, v{56+p}, v{24+8*p+k}")
        def red(reg):
            a(f"v_add_f32 v56, v56, v57\nv_add_f32 v58, v58, v59\nv_add_f32 v{reg}, v56, v58")
            for d in ("quad_perm:[1,0,3,2]", "quad_perm:[2,3,0,1]", "row_half_mirror", "row_mirror"):
                a("s_nop 1")
                a(f"v_add_f32_dpp v{reg}, v{reg}, v{reg} {d} row_mask:0xf bank_mask:0xf")
            a(f"v_mov_b32 v60, v{reg}")
            a("s_nop 1")
            a(f"v_permlane16_swap_b32 v60, v{reg}")
            a("s_nop 1")
            a(f"v_add_f32 v{reg}, v{reg}, v60")
        red(62)
        a(f"v_mul_f32 v62, {f32(1/1024)}, v62")
        for p in range(4): a(f"v_mov_b32 v{56+p}, 0")
        for k in range(8):
            for p in range(4): a(f"v_sub_f32 v{8+p}, v{24+8*p+k}, v62")
            for p in range(4): a(f"v_fmac_f32 v{56+p}, v{8+p}, v{8+p}")
        red(63)
        a(f"v_mul_f32 v63, {f32(1/1024)}, v63")
        a("""v_cvt_pk_bf16_f32 v62, v62, v62
        v_cvt_pk_bf16_f32 v63, v63, v63
        v_lshlrev_b32 v62, 16, v62
        v_lshlrev_b32 v63, 16, v63""")
        a(f"v_add_f32 v63, {f32(1e-5)}, v63")
        a(f"""v_xor_b32 v62, 0x80000000, v62
        v_cvt_pk_bf16_f32 v63, v63, v63
        v_lshlrev_b32 v63, 16, v63
        v_sqrt_f32 v63, v63
        v_cmp_eq_u32 vcc, 0, v2
        v_cvt_pk_bf16_f32 v63, v63, v63
        v_lshlrev_b32 v63, 16, v63
        v_rcp_f32 v63, v63
        v_lshlrev_b32 v4, 3, v1
        v_mov_b32 v5, {hex(OOB)}
        v_cndmask_b32 v4, v5, v4, vcc
        s_lshl_b32 s{sT0}, s{sT0}, 3
        s_add_u32 s{sT0}, s{sT0}, {hex(STATS_OFF)}""")
        a(f"buffer_store_dwordx2 v[62:63], v4, {WS}, s{sT0} offen sc1")
        flag_store(a, sFlG1, 0)
        a(f"buffer_store_dword v{vP0}, v{vP1}, {WS}, s{sFlO} offen sc1")
        NEX = 3
        if not ffn:
            a(f"buffer_store_dword v{vP0}, v{vP1}, {WS}, s{sFlP} offen sc1"); NEX = 4
        def fA(st, mi): return 64 * st + 4 * mi
        def fB(st, ni): return 64 * st + 32 + 4 * ni
        def reads(step1, st):
            ks, slot = step1 & 1, step1 & 3
            LA = [f"ds_read_b128 {ar(fA(st,mi),4)}, v{vArd+ks} offset:{2048*mi}" for mi in range(8)]
            LB = []
            for ni in range(NB):
                for i in range(2):
                    if ffn:
                        if ni < 6: base, off = vBrd + (ni & 1), 32 * ni
                        else: base, off = vBrd + 2, 0
                    else:
                        base, off = vBrd + (ni & 1), 128 * (ni >> 1)
                    LB.append(f"ds_read_b64_tr_b16 {ar(fB(st,ni)+2*i,2)}, v{base} offset:{slot*16384+i*4*PITCH+off}")
            out = []
            while LA or LB:
                if LB: out.append(LB.pop(0))
                if LB: out.append(LB.pop(0))
                if LA: out.append(LA.pop(0))
            return out
        def acc(mi, ni):
            if ffn: return (mi * 7 + ni) * 4
            if ni < 4: return (mi * 4 + ni) * 4
            return 128 + (((mi >> 1) * 2 + (ni - 4)) * 2 + (mi & 1)) * 4
        def mfmas(st, cs=None):
            L = []
            for ni in range(NB):
                for mi in range(8):
                    d = vr(acc(mi, ni), 4)
                    if (not ffn) and ni >= 4:
                        L.append(f"v_mfma_f32_16x16x32_bf16 {d}, {ar(fA(st,mi),4)}, {ar(fB(st,ni),4)}, {d}")
                    else:
                        L.append(f"v_mfma_f32_16x16x32_bf16 {d}, {ar(fB(st,ni),4)}, {ar(fA(st,mi),4)}, {d}")
                if cs is not None:
                    c = ar(CSA + 4 * ni, 4)
                    L.append(f"v_mfma_f32_16x16x32_bf16 {c}, {ar(fB(st,ni),4)}, {ar(ONES,4)}, {c if cs else 0}")
            return L
        for r in range(NB * 32): a(f"v_mov_b32 v{r}, 0") if r not in (62, 63) else None
        a(f"s_waitcnt vmcnt({3*LPS+NEX})")
        a("v_mov_b32 v62, 0\nv_mov_b32 v63, 0")
        a("s_barrier")
        for l in reads(0, 0): a(l)
        a(f"s_waitcnt vmcnt({2*LPS+NEX}) lgkmcnt(0)")
        a("s_barrier")
        advR = [f"s_add_u32 s{sSlR}, s{sSlR}, 0x8000", f"s_cmp_eq_u32 s{sSlR}, 0x18000", f"s_cselect_b32 s{sSlR}, 0, s{sSlR}",
                f"v_add_u32 v{vArd}, s{sSlR}, v{vAb}", f"v_add_u32 v{vArd+1}, s{sSlR}, v{vAb+1}"]
        def step(u, do_dma, do_rd, vm, bar=True, cs=None, pre=(), extra=()):
            M = mfmas(u % 2, cs)
            fill = []
            Rd = [[x] for x in reads(u + 1, (u + 1) % 2)] if do_rd else []
            if do_rd and u % 2 == 1: Rd[0] = Rd[0] + advR[:3]; Rd[1] = Rd[1] + advR[3:]
            D = (dmaA(1 - u % 2) + dmaB(u)) if do_dma else []
            D = D + [list(e) if isinstance(e, (list, tuple)) else [e] for e in extra]
            k = 0
            while Rd or D:
                if Rd: fill.append(Rd.pop(0))
                if Rd: fill.append(Rd.pop(0))
                if Rd and k % 2: fill.append(Rd.pop(0))
                if D: fill.append(D.pop(0))
                k += 1
            for l in pre: a(l)
            for l in interleave(M, fill, 0, len(M) - 6): a(l)
            if bar:
                a(f"s_waitcnt vmcnt({vm}) lgkmcnt(0)")
                a("s_barrier")
        stamp(a, opt, 1)
        a(f"s_mov_b32 s{sIt}, 0")
        lp = f"G1_{path}"
        a(".p2align 6")
        a(f"{lp}_loop:")
        a(f"s_cmp_eq_u32 s{sIt}, s{sCSit}")
        a(f"s_cbranch_scc1 {lp}_cs")
        for u in range(4): step(u, True, True, 2 * LPS)
        a(f"{lp}_tail:")
        a(f"s_add_u32 s{sIt}, s{sIt}, 1")
        a(f"s_cmp_eq_u32 s{sIt}, s{sArr}")
        a(f"s_cbranch_scc1 {lp}_arr")
        a(f"{lp}_tail2:")
        a(f"s_cmp_lg_u32 s{sIt}, 6")
        a(f"s_cbranch_scc1 {lp}_tail3")
        a(f"buffer_load_dword v{vPoll}, off, {DS}, 0 sc1")
        a(f"{lp}_tail3:")
        a(f"s_cmp_lt_u32 s{sIt}, 7")
        a(f"s_cbranch_scc1 {lp}_loop")
        a(f"s_branch {lp}_post")
        a(f"{lp}_arr:")
        a(f"v_cmp_eq_u32 vcc, 0, v{vLane}")
        a(f"v_mov_b32 v{vP1}, {hex(OOB)}")
        a(f"v_mov_b32 v{vP0}, 1")
        a(f"v_cndmask_b32 v{vP1}, v{vP1}, 0, vcc")
        a(f"buffer_atomic_add v{vP0}, v{vP1}, {DS}, 0 offen sc1")
        a(f"s_branch {lp}_tail2")
        a(f"{lp}_cs:")
        for u in range(4): step(u, True, True, 2 * LPS, cs=(u > 0))
        a(f"s_and_b32 s3, s{sMT}, {R-1}")
        a(f"s_mul_i32 s3, s3, {8//R}")
        a(f"s_add_u32 s3, s3, s{sCSit}")
        a(f"s_lshl_b32 s{sT0}, s{sCT}, 3")
        a(f"s_add_u32 s3, s3, s{sT0}")
        a(f"s_lshl_b32 s3, s3, 10")
        a(f"s_add_u32 s3, s3, {hex(CSP_OFF + (16*8*1024 if ffn else 0))}")
        if ffn:
            a(f"s_mul_i32 s{sT0}, s{sWC}, {64-512}")
            a(f"s_add_u32 s{sT0}, s{sT0}, s3")
        for ni in range(NB):
            if ffn:
                if ni < 6: a(f"buffer_store_dwordx4 {ar(CSA+4*ni,4)}, v{vCSo}, {WS}, s3 offen offset:{64*ni} sc1")
                else: a(f"buffer_store_dwordx4 {ar(CSA+4*ni,4)}, v{vCSo}, {WS}, s{sT0} offen offset:{64*6} sc1")
            else:
                a(f"buffer_store_dwordx4 {ar(CSA+4*ni,4)}, v{vCSo}, {WS}, s3 offen offset:{256*(ni>>1)+64*(ni&1)} sc1")
        a(f"s_branch {lp}_tail")
        a(f"{lp}_post:")
        a(f"v_readfirstlane_b32 s3, v{vPoll}")
        a(f"s_cmp_eq_u32 s3, 256")
        a(f"s_cbranch_scc1 {lp}_arrok")
        a(f"{lp}_spin:")
        a(f"buffer_load_dword v{vPoll}, off, {DS}, 0 sc1")
        a("s_waitcnt vmcnt(0)")
        a(f"v_readfirstlane_b32 s3, v{vPoll}")
        a(f"s_cmp_eq_u32 s3, 256")
        a(f"s_cbranch_scc1 {lp}_arrok")
        a("s_sleep 2")
        a(f"s_sub_u32 s{sSpin}, s{sSpin}, 1")
        a(f"s_cmp_gt_i32 s{sSpin}, 0")
        a(f"s_cbranch_scc1 {lp}_spin")
        a(f"{lp}_arrok:")
        vSt, vCp, vTid4 = 232, 234, 231
        a(f"s_lshl_b32 s3, s{sW}, 8")
        a(f"v_lshrrev_b32 v{vTid4}, 2, v{vL16}")
        a(f"v_add_u32 v{vTid4}, s3, v{vTid4}")
        a(f"v_lshlrev_b32 v{vCSo}, 1, v{vTid4}")
        a(f"s_lshl_b32 s{sT0}, s{sMT}, 11")
        a(f"s_add_u32 s{sT0}, s{sT0}, {hex(STATS_OFF)}")
        a(f"s_lshl_b32 s{sT1}, s{sCT}, 13")
        a(f"s_add_u32 s{sT1}, s{sT1}, {hex(CSP_OFF + (16*8*1024 if ffn else 0))}")
        a(f"s_add_u32 s{sT2}, s{sT1}, 4096")
        ex = [f"buffer_load_dwordx2 v[{vSt}:{vSt+1}], v{vCSo}, {WS}, s{sT0} offen sc1"]
        ex += [f"buffer_load_dword v{vCp+p}, v{vTid4}, {WS}, s{sT1 if p < 4 else sT2} offen offset:{1024*(p&3)} sc1" for p in range(8)]
        step(0, False, True, LPS + 9, extra=ex)
        step(1, False, True, 0)
        ex = [[f"v_add_f32 v{vCp+p}, v{vCp+p}, v{vCp+4+p}" for p in range(4)],
              [f"v_add_f32 v{vCp}, v{vCp}, v{vCp+1}", f"v_add_f32 v{vCp+2}, v{vCp+2}, v{vCp+3}", f"v_add_u32 v{vTid4}, {BB}, v{vTid4}"],
              [f"v_add_f32 v{vCp}, v{vCp}, v{vCp+2}"],
              [f"ds_write_b32 v{vTid4}, v{vSt}"], [f"ds_write_b32 v{vTid4}, v{vSt+1} offset:1024"], [f"ds_write_b32 v{vTid4}, v{vCp} offset:2048"]]
        step(2, False, True, 0, extra=ex)
        vRowT, vColG = 242, 243
        pre = [f"s_lshl_b32 s3, s{sWR}, 9", f"s_add_u32 s3, s3, {BB}", f"v_lshl_add_u32 v{vRowT}, v{vT}, 2, s3",
               f"s_lshl_b32 s3, s{sWC}, {9 if ffn else 7}", f"s_add_u32 s3, s3, {BB+2048}", f"v_lshl_add_u32 v{vColG}, v{vG}, 4, s3"]
        def pkfma(d, cs, nm):
            e = nm & ~1
            sel = "op_sel_hi:[1,0,1]" if nm % 2 == 0 else "op_sel:[0,1,0] op_sel_hi:[1,1,1]"
            return f"v_pk_fma_f32 {vr(d,2)}, {vr(cs,2)}, {vr(e,2)}, {vr(d,2)} {sel}"
        def pkmul(d, m):
            e = m & ~1
            sel = "op_sel_hi:[1,0]" if m % 2 == 0 else "op_sel:[0,1] op_sel_hi:[1,1]"
            return f"v_pk_mul_f32 {vr(d,2)}, {vr(d,2)}, {vr(e,2)} {sel}"
        def cvt(b, n=8):
            for k in range(n // 2): a(f"v_cvt_pk_bf16_f32 v{b+k}, v{b+2*k}, v{b+2*k+1}")
        if ffn:
            NM, CS = 244, [224, 232]
            NMR = [244, 245, 246, 247, 248, 249, 240, 241]
            ex = [f"ds_read_b32 v{NMR[mi]}, v{vRowT} offset:{64*mi}" for mi in range(8)]
            ex += [f"ds_read_b128 {vr(CS[0]+4*k,4)}, v{vColG} offset:{64*k}" for k in range(2)]
            step(3, False, False, 0, bar=False, pre=pre, extra=ex)
            stamp(a, opt, 2)
            a(f"s_mul_i32 s{sT0}, s{sCT}, 7")
            a(f"s_add_u32 s{sT0}, s{sT0}, 32")
            a(f"s_lshl_b32 s{sT0}, s{sT0}, 17")
            a(f"s_lshl_b32 s3, s{sMT}, 14")
            a(f"s_add_u32 s{sT0}, s{sT0}, s3")
            a(f"s_lshl_b32 s3, s{sWR}, 13")
            a(f"s_add_u32 s{sT0}, s{sT0}, s3")
            a(f"s_add_u32 s{sT0}, s{sT0}, {hex(A2_OFF)}")
            a(f"s_lshl_b32 s3, s{sWC}, 19")
            a(f"s_add_u32 s{sT1}, s{sT0}, s3")
            a(f"s_lshl_b32 s3, s{sWC}, 3")
            a(f"s_add_u32 s{sT2}, s{sT0}, s3")
            a(f"s_add_u32 s{sT2}, s{sT2}, {3*131072}")
            a(f"s_mul_i32 s3, s{sWC}, {64-512}")
            a(f"v_add_u32 v{vRowT}, s3, v{vColG}")
            for p in range(4):
                cs = CS[p % 2]
                a("s_waitcnt lgkmcnt(0)")
                if p < 2:
                    for k in range(2): a(f"ds_read_b128 {vr(CS[(p+1)%2]+4*k,4)}, v{vColG} offset:{128*(p+1)+64*k}")
                elif p == 2:
                    a(f"ds_read_b128 {vr(CS[1],4)}, v{vRowT} offset:{64*6}")
                n = 8 if p < 3 else 4
                for mi in range(8):
                    b = acc(mi, 2 * p)
                    for k in range(0, n, 2): a(pkfma(b + k, cs + k, NMR[mi]))
                    cvt(b, n)
                    for k in range(n // 2): a(f"v_pk_max_i16 v{b+k}, v{b+k}, 0")
                    if mi % 4 == 0:
                        if p < 3: a(f"s_add_u32 s3, s{sT1}, {p*131072 + (mi>>2)*4096}")
                        else: a(f"s_add_u32 s3, s{sT2}, {(mi>>2)*4096}")
                    if p < 3: a(f"buffer_store_dwordx4 {vr(b,4)}, v{vL16}, {WS}, s3 offen offset:{(mi&3)*1024} sc1")
                    else: a(f"buffer_store_dwordx2 {vr(b,2)}, v{vL16}, {WS}, s3 offen offset:{(mi&3)*1024} sc1")
        else:
            NM, RS, RQ, CQ, CK, CV = 192, 200, 208, 216, 224, 232
            N4 = [234, 196]
            vRowG, vColT = 244, 245
            pre += [f"s_lshl_b32 s3, s{sWR}, 9", f"s_add_u32 s3, s3, {BB}", f"v_lshl_add_u32 v{vRowG}, v{vG}, 4, s3",
                    f"s_lshl_b32 s3, s{sWC}, 7", f"s_add_u32 s3, s3, {BB+2048+512}", f"v_lshl_add_u32 v{vColT}, v{vT}, 2, s3"]
            ex = [f"ds_read_b32 v{NM+mi}, v{vRowT} offset:{64*mi}" for mi in range(8)]
            ex += [f"ds_read_b32 v{RS+mi}, v{vRowT} offset:{1024+64*mi}" for mi in range(8)]
            ex += [f"ds_read_b128 {vr(CQ+4*k,4)}, v{vColG} offset:{64*k}" for k in range(2)]
            ex += [f"ds_read_b128 {vr(CK+4*k,4)}, v{vColG} offset:{256+64*k}" for k in range(2)]
            ex += [f"ds_read_b32 v{CV+k}, v{vColT} offset:{64*k}" for k in range(2)]
            step(3, False, False, 0, bar=False, pre=pre, extra=ex)
            stamp(a, opt, 2)
            vE0, vE1 = 246, 247
            a(f"s_lshl_b32 s{sT0}, s{sCT}, 1")
            a(f"s_add_u32 s{sT0}, s{sT0}, s{sWC}")
            a(f"s_lshl_b32 s{sT0}, s{sT0}, 6")
            a(f"s_lshl_b32 s3, s{sMT}, 3")
            a(f"s_add_u32 s{sT0}, s{sT0}, s3")
            a(f"s_lshl_b32 s3, s{sWR}, 2")
            a(f"s_add_u32 s{sT0}, s{sT0}, s3")
            a(f"s_lshl_b32 s{sT1}, s{sT0}, 11")
            a(f"s_lshl_b32 s{sT2}, s{sT0}, 12")
            a(f"s_add_u32 s{sT2}, s{sT2}, {hex(KV_OFF)}")
            a(f"v_lshlrev_b32 v248, 9, v{vG}")
            a(f"v_lshl_add_u32 v{vE0}, v{vT}, 4, v248")
            a(f"v_lshrrev_b32 v249, 3, v{vT}")
            a(f"v_lshl_add_u32 v248, v249, 8, v248")
            a(f"v_and_b32 v249, 7, v{vT}")
            a(f"v_lshl_add_u32 v{vE1}, v249, 4, v248")
            a("s_waitcnt lgkmcnt(0)")
            for mi in range(8): a(f"v_mul_f32 v{RQ+mi}, {f32(QSCALE)}, v{RS+mi}")
            for mi in range(8):
                b = acc(mi, 2)
                for k in range(0, 8, 2): a(pkfma(b + k, CK + k, NM + mi))
                for k in range(0, 8, 2): a(pkmul(b + k, RS + mi))
                cvt(b)
                if mi % 2 == 0: a(f"s_add_u32 s3, s{sT2}, {(mi>>1)*4096}")
                a(f"buffer_store_dwordx4 {vr(b,4)}, v{vE1}, {WS}, s3 offen offset:{(mi&1)*128} sc1")
                a(f"ds_read_b128 {vr(b+4,4)}, v{vRowG} offset:{64*mi}")
            for mi in range(8):
                b = acc(mi, 0)
                for k in range(0, 8, 2): a(pkfma(b + k, CQ + k, NM + mi))
                for k in range(0, 8, 2): a(pkmul(b + k, RQ + mi))
                cvt(b)
                if mi % 2 == 0: a(f"s_add_u32 s3, s{sT1}, {(mi>>1)*2048}")
                a(f"buffer_store_dwordx4 {vr(b,4)}, v{vE0}, {WS}, s3 offen offset:{(mi&1)*256} sc1")
                a(f"ds_read_b128 {vr(b+4,4)}, v{vRowG} offset:{1024+64*mi}")
            a("s_waitcnt lgkmcnt(0)")
            for u in range(4):
                for nbl in range(2):
                    b = acc(2 * u, 4 + nbl)
                    for ml in range(2):
                        mi = 2 * u + ml
                        n4, r4 = acc(mi, 2) + 4, acc(mi, 0) + 4
                        for k in (0, 2): a(pkfma(b + 4 * ml + k, n4 + k, CV + nbl))
                        for k in (0, 2): a(f"v_pk_mul_f32 {vr(b+4*ml+k,2)}, {vr(b+4*ml+k,2)}, {vr(r4+k,2)}")
                    cvt(b)
                    if nbl == 0: a(f"s_add_u32 s3, s{sT2}, {u*4096}")
                    a(f"buffer_store_dwordx4 {vr(b,4)}, v{vE0}, {WS}, s3 offen offset:{2048+nbl*256} sc1")
            a("s_branch G1_done")
    a("G1_done:")
    stamp(a, opt, 3)
    publish(a, sFlG1, "G1_pub")

def gen_attn(a, opt):
    S = [0, 16]; CM = [32, 48]; O = [64, 80]; P = [96, 104]; Q = [112, 120]
    K = [128, 136]; V = [144, 152]; L = [160, 164]; SEL = 168
    vRd, vRdN, vt0, vt1, vt2, vSt, vX, vRs, vPf = 174, 175, 176, 177, 178, 179, 180, 182, 184
    sOffKV, sM0, sC, sNmax, sT0, sSlot, sHB, sPf = 64, 65, 66, 67, 68, 69, 70, 71
    FLAG = 65536
    a(f"s_lshr_b32 s{sT0}, s{sHead}, 1")
    a(f"s_lshl_b32 s{sT0}, s{sT0}, 7")
    a(f"s_add_u32 s{sT0}, s{sT0}, {hex(FL_QKV)}")
    poll(a, sT0, 8, "AT_poll")
    stamp(a, opt, 4)
    a(f"""s_lshl_b32 s{sHB}, s{sHead}, 18
    s_add_u32 s{sHB}, s{sHB}, {hex(KV_OFF)}
    s_mov_b32 s{sNmax}, 1
    s_lshl_b32 s{sT0}, s{sHead}, 17
    s_lshl_b32 s3, s{sQB}, 14
    s_add_u32 s{sT0}, s{sT0}, s3
    s_lshl_b32 s{sM0}, s{sW}, 12
    s_add_u32 s{sT0}, s{sT0}, s{sM0}""")
    for x in range(2):
        for kk in range(2):
            a(f"buffer_load_dwordx4 {vr(Q[x]+4*kk,4)}, v{vL16}, {WS}, s{sT0} offen offset:{x*2048+kk*1024} sc1")
    a(f"""v_and_b32 v{vt0}, 31, v{vLane}
    v_lshlrev_b32 v{vt0}, 3, v{vt0}
    s_lshl_b32 s{sT0}, s{sQB}, 11
    s_lshl_b32 s3, s{sW}, 9
    s_add_u32 s{sT0}, s{sT0}, s3
    s_add_u32 s{sT0}, s{sT0}, {hex(STATS_OFF+4)}""")
    for x in range(2):
        a(f"buffer_load_dword v{vRs+x}, v{vt0}, {WS}, s{sT0} offen offset:{256*x} sc1")
    a(f"""v_lshrrev_b32 v{vt0}, 4, v{vLane}
    v_lshrrev_b32 v{vt1}, 2, v{vLane}
    v_xor_b32 v{vt0}, v{vt0}, v{vt1}
    v_and_b32 v{vt0}, 1, v{vt0}
    v_cmp_eq_u32 vcc, 0, v{vt0}
    v_mov_b32 v{vt1}, 0x3f803f80
    s_nop 0
    v_cndmask_b32 v{SEL}, 0, v{vt1}, vcc
    v_mov_b32 v{SEL+1}, v{SEL}
    v_mov_b32 v{SEL+2}, v{SEL}
    v_mov_b32 v{SEL+3}, v{SEL}""")
    a(f"""s_lshl_b32 s3, s2, 2
    s_add_u32 s3, s3, s{sW}
    s_mul_i32 s{sPf}, s3, {56*128}
    v_lshlrev_b32 v{vt0}, 7, v{vLane}
    v_cmp_gt_u32 vcc, 4, v{vLane}
    v_mov_b32 v{vt1}, {hex(OOB)}
    s_nop 0
    v_cndmask_b32 v{vPf}, v{vt1}, v{vt0}, vcc
    v_cmp_gt_u32 vcc, 16, v{vLane}
    s_lshl_b32 s{sPf+1}, s3, 11
    s_nop 0
    v_cndmask_b32 v{vPf+2}, v{vt1}, v{vt0}, vcc""")
    srd(a, 44, pWO, 0, 1024 * 2048)
    a("AT_restart:")
    def dma(soff):
        return [f"buffer_load_dwordx4 v{vL16}, {WS}, s{soff} offen offset:{q*1024} sc1 lds" for q in range(4)]
    a(f"v_mov_b32 v{vX}, 0xff800000")
    a(f"v_mov_b32 v{vX+1}, 0xff800000")
    a(f"s_mov_b32 s{sC}, 0")
    a(f"s_mov_b32 s{sT0}, s{sHB}")
    for kk in range(2):
        a(f"buffer_load_dwordx4 {vr(K[0]+4*kk,4)}, v{vL16}, {WS}, s{sT0} offen offset:{kk*1024} sc1")
    a(f"s_add_u32 s{sOffKV}, s{sHB}, s{sM0}")
    for c in range(3):
        a(f"s_add_u32 m0, s{sM0}, {c*16384}")
        a("s_nop 0")
        for l in dma(sOffKV): a(l)
        a(f"s_add_u32 s{sOffKV}, s{sOffKV}, 0x4000")
    a(f"buffer_load_dword v{vPf+1}, v{vPf+2}, {WW}, s{sPf+1} offen")
    a(f"s_mov_b32 s{sSlot}, {3*16384}")
    a(f"v_mov_b32 v{vt0}, {FLAG}")
    a(f"v_mov_b32 v{vt1}, 0")
    a(f"ds_write_b32 v{vt0}, v{vt1}")
    for x in range(2):
        for k in range(16): a(f"v_mov_b32 v{O[x]+k}, 0")
        for k in range(4): a(f"v_mov_b32 v{L[x]+k}, 0")
    for k in range(8):
        a(f"v_mov_b32 v{P[1]+k}, 0")
        a(f"v_mov_b32 v{V[1]+k}, 0")
    a(f"v_mov_b32 v{vRd}, v{vL16}")
    a(f"v_add_u32 v{vRdN}, 0x4000, v{vRd}")
    a("s_waitcnt vmcnt(13)")
    a("s_branch AT_max1")
    a("AT_maxloop:")
    a(f"s_add_u32 s{sT0}, s{sT0}, 4096")
    for kk in range(2):
        a(f"buffer_load_dwordx4 {vr(K[0]+4*kk,4)}, v{vL16}, {WS}, s{sT0} offen offset:{kk*1024} sc1")
    a("s_waitcnt vmcnt(0)")
    a("AT_max1:")
    for x in range(2):
        a(f"v_mfma_f32_32x32x16_bf16 {vr(S[x],16)}, {vr(K[0],4)}, {vr(Q[x],4)}, 0")
        a(f"v_mfma_f32_32x32x16_bf16 {vr(S[x],16)}, {vr(K[0]+4,4)}, {vr(Q[x]+4,4)}, {vr(S[x],16)}")
    a("s_nop 11")
    for x in range(2):
        for k in range(8):
            a(f"v_max3_f32 v{vX+x}, v{S[x]+2*k}, v{S[x]+2*k+1}, v{vX+x}")
    a(f"s_add_u32 s{sC}, s{sC}, 1")
    a(f"s_cmp_lt_u32 s{sC}, s{sNmax}")
    a("s_cbranch_scc1 AT_maxloop")
    for x in range(2):
        a(f"v_mov_b32 v{vt0}, v{vX+x}")
        a("s_nop 1")
        a(f"v_permlane32_swap_b32 v{vt0}, v{vX+x}")
        a("s_nop 1")
        a(f"v_max_f32 v{vt0}, v{vt0}, v{vX+x}")
        a(f"v_sub_f32 v{vt0}, 0, v{vt0}")
        for k in range(16): a(f"v_mov_b32 v{CM[x]+k}, v{vt0}")
    a("s_waitcnt vmcnt(9) lgkmcnt(0)")
    a("s_barrier")
    for kk in range(2):
        a(f"ds_read_b128 {vr(K[0]+4*kk,4)}, v{vRd} offset:{kk*1024}")
    a("s_waitcnt lgkmcnt(0)")
    def qk(x, kb):
        return [f"v_mfma_f32_32x32x16_bf16 {vr(S[x],16)}, {vr(K[kb],4)}, {vr(Q[x],4)}, {vr(CM[x],16)}",
                f"v_mfma_f32_32x32x16_bf16 {vr(S[x],16)}, {vr(K[kb]+4,4)}, {vr(Q[x]+4,4)}, {vr(S[x],16)}"]
    def pv(x, vb):
        return [f"v_mfma_f32_32x32x16_bf16 {vr(O[x],16)}, {vr(V[vb]+4*u,4)}, {vr(P[x]+4*u,4)}, {vr(O[x],16)}" for u in range(2)]
    def ls(x):
        return [f"v_mfma_f32_16x16x32_bf16 {vr(L[x],4)}, {vr(SEL,4)}, {vr(P[x]+4*u,4)}, {vr(L[x],4)}" for u in range(2)]
    for l in qk(0, 0): a(l)
    a("s_nop 7")
    def phase(x, kb, vb, extra=()):
        y = 1 - x
        q_, p_, l_ = qk(y, kb), pv(y, vb), ls(y)
        e = [f"v_exp_f32 v{S[x]+k}, v{S[x]+k}" for k in range(16)]
        c = [f"v_cvt_pk_bf16_f32 v{P[x]+k}, v{S[x]+2*k}, v{S[x]+2*k+1}" for k in range(8)]
        ex = list(extra)
        def X(): return [ex.pop(0)] if ex else []
        seq = ([q_[0]] + X() + e[0:3] + [c[0]] + [q_[1]] + X() + e[3:6] + [c[1]] + [p_[0]] + X() + e[6:9] + [c[2]] +
               [l_[0]] + X() + [e[9], c[3]] + [p_[1]] + X() + e[10:13] + [c[4]] + [l_[1]] + X() + e[13:16] + [c[5], c[6], c[7]])
        assert not ex
        for l in seq: a(l)
    stamp(a, opt, 5)
    a(f"s_mov_b32 s{sC}, 0")
    a("s_waitcnt vmcnt(5)")
    a("s_branch AT_loop_b")
    a(".p2align 6")
    a("AT_loop:")
    a("s_waitcnt vmcnt(6)")
    a("AT_loop_b:")
    a("s_barrier")
    a(f"s_cmp_lt_u32 s{sC}, 13")
    a(f"s_cselect_b32 s{sT0}, s{sOffKV}, {hex(OOB)}")
    a(f"s_add_u32 m0, s{sM0}, s{sSlot}")
    a(f"s_add_u32 s{sOffKV}, s{sOffKV}, 0x4000")
    a(f"s_add_u32 s{sSlot}, s{sSlot}, 0x4000")
    a(f"s_and_b32 s{sSlot}, s{sSlot}, 0xffff")
    for t in range(4):
        kb, kn = t % 2, (t + 1) % 2
        rd = []
        for kk in range(2):
            if t < 3: rd.append(f"ds_read_b128 {vr(K[kn]+4*kk,4)}, v{vRd} offset:{(t+1)*4096+kk*1024}")
            else: rd.append(f"ds_read_b128 {vr(K[kn]+4*kk,4)}, v{vRdN} offset:{kk*1024}")
        for u in range(2):
            rd.append(f"ds_read_b128 {vr(V[kb]+4*u,4)}, v{vRd} offset:{t*4096+2048+u*1024}")
        phase(0, kb, kn, rd)
        a("s_waitcnt lgkmcnt(0)")
        ex = []
        if t == 0: ex = dma(sT0) + [f"buffer_load_dword v{vPf+1}, v{vPf}, {W2S}, s{sPf} offen", f"s_add_u32 s{sPf}, s{sPf}, 512"]
        if t == 3:
            ex = [f"v_mov_b32 v{vRd}, v{vRdN}", f"v_add_u32 v{vRdN}, 0x4000, v{vRdN}", f"v_and_b32 v{vRdN}, 0xffff, v{vRdN}"]
        phase(1, kn, kb, ex)
    a(f"s_add_u32 s{sC}, s{sC}, 1")
    a(f"s_cmp_lt_u32 s{sC}, 16")
    a("s_cbranch_scc1 AT_loop")
    a("s_nop 1")
    for l in pv(1, 1) + ls(1): a(l)
    stamp(a, opt, 6)
    a("s_nop 7")
    a(f"v_add_f32 v{vt1}, v{L[0]}, v{L[1]}")
    a(f"v_mov_b32 v{vt2}, {f32(2.0**30)}")
    a(f"v_mov_b32 v{vt0}, {FLAG}")
    a(f"v_cmp_nle_f32 vcc, v{vt1}, v{vt2}")
    a(f"s_cmp_eq_u64 vcc, 0")
    a("s_cbranch_scc1 AT_ok")
    a(f"v_mov_b32 v{vt1}, 1")
    a(f"ds_write_b32 v{vt0}, v{vt1}")
    a("AT_ok:")
    a("s_waitcnt vmcnt(0) lgkmcnt(0)")
    a("s_barrier")
    a(f"ds_read_b32 v{vt2}, v{vt0}")
    a("s_waitcnt lgkmcnt(0)")
    a(f"v_readfirstlane_b32 s3, v{vt2}")
    a(f"s_cmp_eq_u32 s{sNmax}, 1")
    a(f"s_cselect_b32 s3, s3, 0")
    a(f"s_cmp_eq_u32 s3, 0")
    a("s_cbranch_scc1 AT_fin")
    a(f"s_mov_b32 s{sNmax}, 64")
    a("s_barrier")
    a("s_branch AT_restart")
    a("AT_fin:")
    a(f"""v_bfe_u32 v{vt0}, v{vLane}, 4, 1
    v_lshlrev_b32 v{vt0}, 10, v{vt0}
    v_lshrrev_b32 v{vt1}, 5, v{vLane}
    v_lshl_add_u32 v{vt0}, v{vt1}, 8, v{vt0}
    v_and_b32 v{vt1}, 15, v{vLane}
    v_lshl_add_u32 v{vSt}, v{vt1}, 4, v{vt0}
    s_lshl_b32 s{sT0}, s{sHead}, 17
    s_lshl_b32 s3, s{sQB}, 14
    s_add_u32 s{sT0}, s{sT0}, s3
    s_add_u32 s{sT0}, s{sT0}, s{sM0}
    s_add_u32 s{sT0}, s{sT0}, {hex(A2_OFF)}""")
    for x in range(2):
        a(f"v_mul_f32 v{L[x]}, v{L[x]}, v{vRs+x}")
        a(f"v_rcp_f32 v{L[x]}, v{L[x]}")
    for x in range(2):
        o = O[x]
        for k in range(16): a(f"v_mul_f32 v{o+k}, v{o+k}, v{L[x]}")
        for ch in range(2):
            for half in range(2):
                j = ch + 2 * half
                a(f"v_cvt_pk_bf16_f32 v{S[x]+4*ch+2*half}, v{o+4*j}, v{o+4*j+1}")
                a(f"v_cvt_pk_bf16_f32 v{S[x]+4*ch+2*half+1}, v{o+4*j+2}, v{o+4*j+3}")
        for ch in range(2):
            a(f"buffer_store_dwordx4 {vr(S[x]+4*ch,4)}, v{vSt}, {WS}, s{sT0} offen offset:{2048*x+512*ch} sc1")
    publish(a, sFlO, "AT_pub")
    stamp(a, opt, 7)

def gen_g2(a, opt):
    D = 4
    vBdma, vBrd = 128, 132
    vt0, vt1, vt2, vt3, vG, vT = 140, 141, 142, 143, 144, 145
    vRs, vXo, vPl = 148, 146, 147
    PR = 160
    sKG, sMH, sOffA, sOffB, sM0, sIt, sSwA, sSwB, sT0, sT1, sA0, sB0, sRole = 64, 65, 66, 67, 68, 69, 70, 71, 72, 73, 74, 75, 76
    a(f"s_lshr_b32 s{sT0}, s{sMT2}, 1")
    a(f"s_lshl_b32 s{sT0}, s{sT0}, 7")
    a(f"s_add_u32 s{sT0}, s{sT0}, {hex(FL_H)}")
    poll(a, sT0, 16, "G2_poll")
    srd(a, 44, pW2, 0, 3584 * 2048)
    a(f"""s_lshr_b32 s{sRole}, s{sJ}, 4
    s_lshr_b32 s{sKG}, s{sW}, 1
    s_and_b32 s{sMH}, s{sW}, 1
    v_lshrrev_b32 v{vG}, 4, v{vLane}
    v_and_b32 v{vT}, 15, v{vLane}
    s_lshl_b32 s{sA0}, s{sMT2}, 13
    s_lshl_b32 s3, s{sMH}, 12
    s_add_u32 s{sA0}, s{sA0}, s3
    s_lshl_b32 s{sM0}, s{sKG}, 16
    s_add_u32 s{sM0}, s{sM0}, s3
    s_lshl_b32 s3, s{sKG}, 17
    s_add_u32 s{sA0}, s{sA0}, s3
    s_add_u32 s{sA0}, s{sA0}, {hex(A2_OFF)}
    s_lshl_b32 s{sB0}, s{sKG}, 16
    s_lshl_b32 s3, s{sMH}, 15
    s_add_u32 s{sB0}, s{sB0}, s3
    s_lshl_b32 s3, s{sNT}, 8
    s_add_u32 s{sB0}, s{sB0}, s3
    s_mul_i32 s3, s{sRole}, {72*131072}
    s_add_u32 s{sOffA}, s{sA0}, s3
    s_add_u32 s{sOffA}, s{sOffA}, {32*131072}
    s_mul_i32 s3, s{sRole}, {72*65536}
    s_add_u32 s{sOffB}, s{sB0}, s3
    s_cmp_eq_u32 s{sRole}, 1
    s_cselect_b32 s{sSwA}, 2, 99
    s_cselect_b32 s{sSwB}, 1, 99""")
    a(f"""v_lshlrev_b32 v{vt0}, 1, v{vG}
    v_xor_b32 v{vt0}, v{vt0}, v{vT}
    v_lshlrev_b32 v{vt0}, 4, v{vt0}
    v_lshl_add_u32 v{vBdma}, v{vG}, 11, v{vt0}
    v_xor_b32 v{vBdma+1}, 128, v{vBdma}
    v_add_u32 v{vBdma+2}, {2*(8192-1024)}, v{vBdma}
    v_add_u32 v{vBdma+1}, {8192-1024}, v{vBdma+1}
    v_add_u32 v{vBdma+3}, {2*(8192-1024)}, v{vBdma+1}""")
    def fA(st, mi): return 16 * st + 4 * mi
    def fB(st, ni): return 64 + 32 * st + 4 * ni
    def acc(mi, ni): return (ni >> 2) * 64 + (mi * 4 + (ni & 3)) * 4
    def dmaB(j):
        L = [[f"s_add_u32 m0, s{sM0}, {(j%8)*8192}", "s_nop 0",
              f"buffer_load_dwordx4 v{vBdma}, {WW}, s{sOffB} offen lds"]]
        for q in range(1, 4):
            L.append([f"buffer_load_dwordx4 v{vBdma+q}, {WW}, s{sOffB} offen offset:{1024*q} lds"])
        L[-1].append(f"s_add_u32 s{sOffB}, s{sOffB}, 0x20000")
        return L
    def ldA(st, mi):
        return f"buffer_load_dwordx4 {ar(fA(st,mi),4)}, v{vL16}, {WS}, s{sOffA} offen offset:{mi*1024} sc1"
    incA = f"s_add_u32 s{sOffA}, s{sOffA}, 0x40000"
    def rdB(j):
        return [f"ds_read_b64_tr_b16 {ar(fB(j%2,ni)+2*i,2)}, v{vBrd+ni} offset:{(j%8)*8192+i*4096}" for ni in range(8) for i in range(2)]
    for g in dmaB(0):
        for l in g: a(l)
    for j in range(D):
        for g in dmaB(j + 1):
            for l in g: a(l)
        for mi in range(4): a(ldA(j % D, mi))
        a(incA)
    a(f"""v_lshrrev_b32 v{vt0}, 2, v{vLane}
    v_and_b32 v{vt1}, 7, v{vt0}
    v_lshlrev_b32 v{vt0}, 8, v{vt0}
    v_and_b32 v{vt2}, 3, v{vLane}
    v_lshl_add_u32 v{vt0}, v{vt2}, 3, v{vt0}
    s_lshl_b32 s3, s{sKG}, 16
    v_add_u32 v{vt0}, s3, v{vt0}
    s_lshl_b32 s3, s{sKG}, 2
    v_xor_b32 v{vt1}, s3, v{vt1}""")
    for b in range(8):
        a(f"v_xor_b32 v{vt2}, {b}, v{vt1}")
        a(f"v_lshl_add_u32 v{vBrd+b}, v{vt2}, 5, v{vt0}")
    for r in range(128): a(f"v_mov_b32 v{r}, 0")
    a(f"s_waitcnt vmcnt({8*D})")
    a("s_barrier")
    for l in rdB(0): a(l)
    stamp(a, opt, 8)
    def step(i, issue, vm, rd=True, extra=()):
        a(f"s_waitcnt vmcnt({vm}) lgkmcnt(0)")
        a("s_barrier")
        Bd = dmaB(i + D + 1) if issue else []
        R = rdB(i + 1) if rd else []
        ex = list(extra)
        n = 0
        for mi in range(4):
            for ni in range(8):
                d = vr(acc(mi, ni), 4)
                a(f"v_mfma_f32_16x16x32_bf16 {d}, {ar(fB(i%2,ni),4)}, {ar(fA(i%D,mi),4)}, {d}")
                if mi == 0 and ni % 2 == 1 and Bd:
                    for l in Bd[ni >> 1]: a(l)
                elif mi >= 1 and ni == 0 and issue:
                    a(ldA(i % D, mi - 1))
                elif R and n < 28:
                    a(R.pop(0))
                elif ex:
                    a(ex.pop(0))
                n += 1
        assert not R and not ex, (R, ex)
        if issue:
            a(ldA(i % D, 3))
            a(incA)
    a(f"s_mov_b32 s{sIt}, 0")
    a(".p2align 6")
    a("G2_loop:")
    a(f"s_cmp_eq_u32 s{sIt}, s{sSwA}")
    a("s_cbranch_scc1 G2_swA")
    a("G2_swA_back:")
    for i in range(8):
        if i == 7:
            a(f"s_cmp_eq_u32 s{sIt}, s{sSwB}")
            a(f"s_cselect_b32 s44, s{pWO}, s44")
            a(f"s_cselect_b32 s45, s{pWO+1}, s45")
            a(f"s_cselect_b32 s46, {hex(1024*2048)}, s46")
            a(f"s_cselect_b32 s{sOffB}, s{sB0}, s{sOffB}")
        step(i, True, 8 * (D - 1))
    a(f"s_add_u32 s{sIt}, s{sIt}, 1")
    a(f"s_cmp_lt_u32 s{sIt}, 4")
    a("s_cbranch_scc1 G2_loop")
    a("s_branch G2_tail")
    a("G2_swA:")
    a(f"s_lshr_b32 s{sT0}, s{sMT2}, 1")
    a(f"s_lshl_b32 s{sT0}, s{sT0}, 7")
    a(f"s_add_u32 s{sT0}, s{sT0}, {hex(FL_O)}")
    poll(a, sT0, 32, "G2_pollo")
    a(f"s_mov_b32 s{sOffA}, s{sA0}")
    a("s_branch G2_swA_back")
    a("G2_tail:")
    a(f"""s_lshl_b32 s{sT0}, s{sMT2}, 10
    s_lshl_b32 s3, s{sMH}, 9
    s_add_u32 s{sT0}, s{sT0}, s3
    s_add_u32 s{sT0}, s{sT0}, {hex(STATS_OFF+4)}
    v_lshlrev_b32 v{vt0}, 3, v{vT}
    s_lshl_b32 s{sT1}, s{sMT2}, 18
    s_lshl_b32 s3, s{sMH}, 17
    s_add_u32 s{sT1}, s{sT1}, s3
    s_lshl_b32 s3, s{sNT}, 8
    s_add_u32 s{sT1}, s{sT1}, s3
    s_lshl_b32 s3, s{sKG}, 7
    s_add_u32 s{sT1}, s{sT1}, s3
    s_lshl_b32 s{sA0}, s{sTile}, 16
    s_lshl_b32 s3, s{sW}, 14
    s_add_u32 s{sA0}, s{sA0}, s3
    s_add_u32 s{sA0}, s{sA0}, {hex(PART_OFF)}""")
    ex = [f"buffer_load_dword v{vRs+mi}, v{vt0}, {WS}, s{sT0} offen offset:{128*mi} sc1" for mi in range(4)]
    step(0, False, 24, extra=ex)
    step(1, False, 16 + 4)
    step(2, False, 8 + 4)
    step(3, False, 4, rd=False)
    stamp(a, opt, 9)
    a("s_barrier")
    a(f"s_lshl_b32 s3, s{sW}, 14")
    a(f"v_add_u32 v{vt0}, s3, v{vL16}")
    a(f"s_xor_b32 s3, s{sW}, 2")
    a(f"s_lshl_b32 s3, s3, 14")
    a(f"v_add_u32 v{vt1}, s3, v{vL16}")
    a(f"s_cmp_eq_u32 s{sRole}, 1")
    a("s_cbranch_scc1 G2_fin")
    a(f"v_lshlrev_b32 v{vXo}, 11, v{vT}")
    a(f"v_lshl_add_u32 v{vXo}, v{vG}, 3, v{vXo}")
    for mi in range(4):
        a(f"s_add_u32 s3, s{sT1}, {mi*32768}")
        for nl in range(4):
            a(f"buffer_load_dwordx2 {vr(PR+2*(mi*4+nl),2)}, v{vXo}, {XS}, s3 offen offset:{32*nl}")
    def exchange():
        for k in range(16): a(f"ds_write_b128 v{vt0}, {vr(64+4*k,4)} offset:{1024*k}")
        a("s_waitcnt lgkmcnt(0)")
        a("s_barrier")
        for k in range(16): a(f"ds_read_b128 {vr(64+4*k,4)}, v{vt1} offset:{1024*k}")
    exchange()
    a("s_mov_b32 s3, 0xffff0000")
    a("s_waitcnt vmcnt(0)")
    for k in range(16):
        mi = k >> 2
        a(f"s_waitcnt lgkmcnt({15-k})")
        for e in range(4): a(f"v_add_f32 v{4*k+e}, v{4*k+e}, v{64+4*k+e}")
        for e in range(2):
            a(f"v_lshlrev_b32 v{64+4*k+2*e}, 16, v{PR+2*k+e}")
            a(f"v_and_b32 v{64+4*k+2*e+1}, s3, v{PR+2*k+e}")
        for e in range(4): a(f"v_fma_f32 v{4*k+e}, v{4*k+e}, v{vRs+mi}, v{64+4*k+e}")
        if k % 4 == 0: a(f"s_add_u32 s{sT0}, s{sA0}, {mi*4096}")
        a(f"buffer_store_dwordx4 {vr(4*k,4)}, v{vL16}, {WS}, s{sT0} offen offset:{1024*(k&3)} sc1")
    publish(a, sFlP, "G2_pub")
    stamp(a, opt, 10)
    a("s_endpgm")
    a("G2_fin:")
    exchange()
    poll(a, sFlP, 1, "G2_pollp")
    for k in range(16):
        if k % 4 == 0: a(f"s_add_u32 s{sT0}, s{sA0}, {(k>>2)*4096}")
        a(f"buffer_load_dwordx4 {vr(PR+4*k,4)}, v{vL16}, {WS}, s{sT0} offen offset:{1024*(k&3)} sc1")
    a(f"""v_lshlrev_b32 v{vXo}, 11, v{vT}
    v_and_b32 v{vt2}, 1, v{vG}
    v_lshl_add_u32 v{vXo}, v{vt2}, 5, v{vXo}
    v_lshrrev_b32 v{vt2}, 1, v{vG}
    v_lshl_add_u32 v{vXo}, v{vt2}, 4, v{vXo}
    s_waitcnt lgkmcnt(0)""")
    for k in range(64): a(f"v_add_f32 v{k}, v{k}, v{64+k}")
    nst = 0
    for k2 in range(8):
        mi, p = k2 >> 1, k2 & 1
        b = 8 * k2
        a(f"s_waitcnt vmcnt({14-2*k2+nst})")
        for e in range(8): a(f"v_fma_f32 v{b+e}, v{b+e}, v{vRs+mi}, v{PR+b+e}")
        for e in range(4): a(f"v_cvt_pk_bf16_f32 v{b+e}, v{b+2*e}, v{b+2*e+1}")
        if p == 0: a(f"s_add_u32 s3, s{sT1}, {mi*32768}")
        else: a("s_nop 0")
        a("s_nop 0")
        a(f"v_permlane16_swap_b32 v{b}, v{b+2}")
        a(f"v_permlane16_swap_b32 v{b+1}, v{b+3}")
        a(f"buffer_store_dwordx4 {vr(b,4)}, v{vXo}, {OS}, s3 offen offset:{64*p}")
        nst += 1
    stamp(a, opt, 10)
    a("K_end:")
    a("s_endpgm")

HEADER = open("cdna_kernels/" + NAME + ".s.ref").read().split("; @launch")[0]

def build(opt=None):
    opt = opt or {}
    a = Asm()
    head = HEADER + "; @launch grid=(256,1,1) block=(256,1,1) lds=163840\n"
    a('.amdgcn_target "amdgcn-amd-amdhsa--gfx950"')
    a(".text")
    gen_entry(a, opt); gen_g1(a, opt); gen_attn(a, opt); gen_g2(a, opt)
    return head + a.text() + '.section .rodata,"a"\n' + kernel_desc(KNAME, 256 + 160, 256, 102)

if __name__ == "__main__":
    out = sys.argv[1] if len(sys.argv) > 1 else "cdna_kernels/" + NAME + ".s"
    opt = dict(kv.split("=") for kv in sys.argv[2:])
    open(out, "w").write(build(opt))
```
